```python
import torch

def _softmax(x, axis=-1):
    return torch.softmax(x, dim=axis)

def _gelu(x):
    return torch.nn.functional.gelu(x, approximate='tanh')

def _silu(x):
    return torch.nn.functional.silu(x)

def _sigmoid(x):
    return torch.sigmoid(x)

def _layernorm(x, axis=-1, eps=1e-05):
    m = x.mean(dim=axis, keepdim=True)
    v = x.var(dim=axis, keepdim=True, unbiased=False)
    return (x - m) / torch.sqrt(v + eps)

def _scatter_add(tgt, idx, src, axis=0):
    return tgt.clone().index_add_(axis, idx, src)

def _segment_sum(src, seg, n):
    out = torch.zeros((n,) + src.shape[1:], dtype=src.dtype)
    return out.index_add_(0, seg, src)

def _pad(x, pw):
    flat = tuple((v for pair in reversed(pw) for v in pair))
    return torch.nn.functional.pad(x, flat)
kernel_name = 'adaLN_cond__sliding_block_cached__glu_gated_reglu__prompt'

def setup_inputs():

    _w = lambda a: (lambda t: t.to(torch.bfloat16) if t.is_floating_point() else t)(torch.as_tensor(a))

    def _A_setup():
        B, Sq, D = (1, 2048, 576)
        Hq, Hkv, Sk, Dh = (32, 16, 2048, 128)
        assert Hq % Hkv == 0, (Hq, Hkv)
        return {'x': _w((lambda *s: torch.randn(*s, dtype=torch.bfloat16) * 0.05)(B, Sq, D)), 'k_cache': _w((lambda *s: torch.randn(*s, dtype=torch.bfloat16) * 1.6)(B, Hkv, Sk, Dh)), 'v_cache': _w((lambda *s: torch.randn(*s, dtype=torch.bfloat16) * 0.8)(B, Hkv, Sk, Dh)), 'wq': _w((lambda *s: torch.randn(*s, dtype=torch.bfloat16) * 1.6)(D, Hq * Dh) * D ** (-0.5)), 'wo': _w((lambda *s: torch.randn(*s, dtype=torch.bfloat16) * 0.8)(Hq * Dh, D) * (Hq * Dh) ** (-0.5))}
    _A_in = _A_setup()

    def _B_setup():
        B, S, D, F = (1, 2048, 576, 4608)
        return {'x': _w((lambda *s: torch.randn(*s, dtype=torch.bfloat16) * 0.05)(B, S, D)), 'W_gate': _w((lambda *s: torch.randn(*s, dtype=torch.bfloat16) * 0.4)(D, F) * (2.0 / D) ** 0.5), 'W_up': _w((lambda *s: torch.randn(*s, dtype=torch.bfloat16) * 0.4)(D, F) * (2.0 / D) ** 0.5), 'W_down': _w((lambda *s: torch.randn(*s, dtype=torch.bfloat16) * 0.4)(F, D) * (1.0 / F) ** 0.5)}
    _B_in = _B_setup()
    return {'A_x': _A_in['x'], 'A_k_cache': _A_in['k_cache'], 'A_v_cache': _A_in['v_cache'], 'A_wq': _A_in['wq'], 'A_wo': _A_in['wo'], 'B_x': _B_in['x'], 'B_W_gate': _B_in['W_gate'], 'B_W_up': _B_in['W_up'], 'B_W_down': _B_in['W_down'], 'c': _w((lambda *s: torch.randn(*s, dtype=torch.bfloat16) * 0.2)(1, 576) * 8.0), 'w_mod': _w((lambda *s: torch.randn(*s, dtype=torch.bfloat16) * 0.2)(576, 6 * 576) * 576 ** (-0.5) * 8.0)}

def reference(A_x, A_k_cache, A_v_cache, A_wq, A_wo, B_x, B_W_gate, B_W_up, B_W_down, c, w_mod):

    def _A_ref(x, k_cache, v_cache, wq, wo):
        B, Sq, D = x.shape
        Hq, Dh = (32, 128)
        Hkv, Sk = (k_cache.shape[1], k_cache.shape[2])
        W = min(4096, max(256, Sk // 4))
        rep = Hq // Hkv
        q = (lambda x, *d: x.permute(*d))((x @ wq).reshape(B, Sq, Hq, Dh), 0, 2, 1, 3)
        k = (lambda x, n, axis: torch.repeat_interleave(x, n, dim=axis))(k_cache[:, :, Sk - W:, :], rep, axis=1)
        v = (lambda x, n, axis: torch.repeat_interleave(x, n, dim=axis))(v_cache[:, :, Sk - W:, :], rep, axis=1)
        scores = torch.einsum('bhqd,bhkd->bhqk', q, k) * Dh ** (-0.5)
        p = _softmax(scores, axis=-1)
        o = torch.einsum('bhqk,bhkd->bhqd', p, v)
        return (lambda x, *d: x.permute(*d))(o, 0, 2, 1, 3).reshape(B, Sq, Hq * Dh) @ wo

    def _B_ref(x, W_gate, W_up, W_down):
        gate = torch.einsum('bsd,df->bsf', x, W_gate)
        up = torch.einsum('bsd,df->bsf', x, W_up)
        gate = gate * (lambda x, dt: x.to(dt))(gate > 0, gate.dtype)
        h = gate * up
        return torch.einsum('bsf,fd->bsd', h, W_down)
    x = A_x
    mod = (_silu(c) @ w_mod).reshape(c.shape[0], 6, 1, -1)
    sa, ca, ga, sb, cb, gb = (mod[:, 0].clone(), mod[:, 1].clone(), mod[:, 2].clone(), mod[:, 3].clone(), mod[:, 4].clone(), mod[:, 5].clone())
    h = _layernorm(x, axis=-1) * (1 + ca) + sa
    x = x + ga * _A_ref(h, A_k_cache, A_v_cache, A_wq, A_wo)
    h = _layernorm(x, axis=-1) * (1 + cb) + sb
    x = x + gb * _B_ref(h, B_W_gate, B_W_up, B_W_down)
    return x
```

```python
KA = dict(x=0, kc=8, vc=16, wq=24, wo=32, bx=40, wg=48, wu=56, wd=64, c=72, wmod=80, out=88, dbg=96, ws=104)

def R(kind, lo, n=1):
    return {(kind, lo + i) for i in range(n)}
def rt(kind, lo, n=1):
    return f"{kind}{lo}" if n == 1 else f"{kind}[{lo}:{lo+n-1}]"

class Reg:
    __slots__ = ("k", "lo", "n")
    def __init__(s, k, lo, n=1): s.k = k; s.lo = lo; s.n = n
    def __str__(s): return rt(s.k, s.lo, s.n)
    def set(s): return R(s.k, s.lo, s.n)
    def __getitem__(s, i): return Reg(s.k, s.lo + i, 1)
    def sub(s, i, n): return Reg(s.k, s.lo + i, n)
def V(lo, n=1): return Reg("v", lo, n)
def A(lo, n=1): return Reg("a", lo, n)

class I:
    __slots__ = ("t", "kind", "rd", "wr", "c", "tag", "sz")
    def __init__(s, t, kind="other", rd=(), wr=(), c=(), tag=None, sz=None):
        s.t = t; s.kind = kind
        s.rd = set().union(*[r.set() for r in rd]) if rd else set()
        s.wr = set().union(*[r.set() for r in wr]) if wr else set()
        s.c = set().union(*[r.set() for r in c]) if c else set()
        s.tag = tag; s.sz = sz

def mfma(d, a, b, c=None):
    if c is None: c = d
    if isinstance(c, Reg):
        return I(f"MF {d}, {a}, {b}, {c}", "mfma", rd=(a, b, c), wr=(d,), c=(c,))
    return I(f"MF {d}, {a}, {b}, {c}", "mfma", rd=(a, b), wr=(d,))
def valu(op, d, *srcs, trans=False, extra=""):
    rd = [s for s in srcs if isinstance(s, Reg)]
    return I(f"{op} {d}, " + ", ".join(str(s) for s in srcs) + extra, "trans" if trans else "valu", rd=rd, wr=(d,))
def valu_rmw(op, d, *srcs):
    rd = [s for s in srcs if isinstance(s, Reg)] + [d]
    return I(f"{op} {d}, " + ", ".join(str(s) for s in srcs), "valu", rd=rd, wr=(d,))
def dsr_tr(d, addr, off):
    return I(f"TR {d}, {addr}, {off}", "dsr", rd=(addr,), wr=(d,))
def dsr64(d, addr, off):
    return I(f"DR {d}, {addr}, {off}", "dsr", rd=(addr,), wr=(d,))
def salu(t): return I(t, "salu")
def raw(t, kind="other"): return I(t, kind)
def dma(voff, srd, soff, off, tag):
    o = f" offset:{off}" if off else ""
    return I(f"buffer_load_dwordx4 {voff}, s[{srd}:{srd+3}], {soff} offen{o} lds", "vmem", rd=(voff,), tag=tag)
def gload(d, voff, srd, soff, off, tag, n="x4", flags=""):
    o = f" offset:{off}" if off else ""
    return I(f"buffer_load_dword{n} {d}, {voff}, s[{srd}:{srd+3}], {soff} offen{o}{flags}", "vmem", rd=(voff,), wr=(d,), tag=tag)
def gstore(d, voff, srd, soff, off, tag="st", n="x4", flags=""):
    o = f" offset:{off}" if off else ""
    return I(f"buffer_store_dword{n} {d}, {voff}, s[{srd}:{srd+3}], {soff} offen{o}{flags}", "vst", rd=(voff, d), tag=tag)
class WaitVm:
    def __init__(s, tags): s.tags = set(tags)
class WaitLg:
    def __init__(s, need): s.need = set().union(*[r.set() for r in need])

MACROS = """
.macro MF d, a, b, c
v_mfma_f32_16x16x32_bf16 \\d, \\a, \\b, \\c
.endm
.macro TR d, a, o
ds_read_b64_tr_b16 \\d, \\a offset:\\o
.endm
.macro DR d, a, o
ds_read_b64 \\d, \\a offset:\\o
.endm
"""

def resolve(prog):
    out = []
    vq = []
    lq = []
    for x in prog:
        if isinstance(x, WaitVm):
            idx = max([i for i, t in enumerate(vq) if t in x.tags], default=-1)
            if idx >= 0:
                n = len(vq) - 1 - idx
                assert n <= 63
                out.append(I(f"s_waitcnt vmcnt({n})", "wait"))
                vq = vq[idx + 1:]
        elif isinstance(x, WaitLg):
            idx = max([i for i, w in enumerate(lq) if w & x.need], default=-1)
            if idx >= 0:
                n = len(lq) - 1 - idx
                assert n <= 15, n
                out.append(I(f"s_waitcnt lgkmcnt({n})", "wait"))
                lq = lq[idx + 1:]
        else:
            if x.kind in ("vmem", "vst"):
                vq.append(x.tag)
                if len(vq) > 63: raise Exception("vmcnt overflow")
            if x.kind in ("dsr", "dsw"):
                lq.append(x.wr)
            if x.kind == "waitall":
                vq = []; lq = []
            if x.kind == "waitlg0": lq = []
            if x.kind == "waitvm0": vq = []
            out.append(x)
    return out

def check_lds_raw(prog):
    import re
    lq = []
    for x in prog:
        if x.kind == "wait" and "lgkmcnt" in x.t:
            n = int(re.search(r"lgkmcnt\((\d+)\)", x.t).group(1))
            lq = lq[len(lq) - n:] if n else []
        elif x.kind in ("waitall", "waitlg0"):
            lq = []
        else:
            pend = set().union(*lq) if lq else set()
            if (x.rd | x.wr) & pend and x.kind != "dsr":
                raise Exception("LDS RAW not covered: " + x.t)
            if x.kind == "dsr":
                if x.wr & pend: raise Exception("LDS WAW: " + x.t)
                lq.append(x.wr)
            if x.kind == "dsw": lq.append(set())

def nop_states(x):
    if x.t.startswith("s_nop"):
        return int(x.t.split()[1]) + 1
    return 1

def pad_hazards(prog, mf_pass=4):
    D_RAW = {4: 8, 8: 12}[mf_pass]; C_WAR = {4: 3, 8: 7}[mf_pass]; C_PART = {4: 6, 8: 10}[mf_pass]
    out = []
    pos = 0
    last_mf_w = {}; last_mf_c = {}; last_valu_w = {}; last_trans_w = {}; last_st_rd = {}; mf_d_of = {}
    nins = 0
    for x in prog:
        need = 0
        def req(table, regs, dist):
            nonlocal need
            for r in regs:
                if r in table:
                    need = max(need, dist - (pos - table[r] - 1))
        if x.kind == "mfma":
            req(last_valu_w, x.rd, 2)
            ab = x.rd - x.c
            req(last_mf_w, ab, D_RAW)
            for r in x.c:
                if r in last_mf_w and mf_d_of[r] != frozenset(x.c):
                    need = max(need, C_PART - (pos - last_mf_w[r] - 1))
        elif x.kind in ("valu", "trans"):
            req(last_mf_w, x.rd | x.wr, D_RAW)
            req(last_mf_c, x.wr, C_WAR)
            if x.kind == "valu": req(last_trans_w, x.rd, 1)
            req(last_st_rd, x.wr, 2)
            if "permlane" in x.t or "dpp" in x.t: req(last_valu_w, x.rd | x.wr, 2)
            if "readfirstlane" in x.t or "readlane" in x.t: req(last_valu_w, x.rd, 1)
        elif x.kind in ("vmem", "vst", "dsr", "dsw"):
            req(last_mf_w, x.rd | x.wr, D_RAW)
            req(last_st_rd, x.wr, 1)
        if x.kind == "vmem" and x.t.endswith(" lds") and out and out[-1].kind == "salu" and " m0," in out[-1].t:
            need = max(need, 1)
        while need > 0:
            n = min(need, 16)
            out.append(I(f"s_nop {n-1}", "nop")); pos += n; need -= n; nins += 1
        out.append(x)
        if x.kind == "mfma":
            for r in x.wr: last_mf_w[r] = pos; mf_d_of[r] = frozenset(x.wr)
            for r in x.c: last_mf_c[r] = pos
        elif x.kind in ("valu", "trans"):
            for r in x.wr:
                last_valu_w[r] = pos
                if x.kind == "trans": last_trans_w[r] = pos
                else: last_trans_w.pop(r, None)
        elif x.kind == "vst":
            for r in x.rd: last_st_rd[r] = pos
        pos += nop_states(x)
    return out, nins

class Kern:
    def __init__(s, name, vgpr=512, accum=256, sgpr=102):
        s.name = name; s.p = []; s.vgpr = vgpr; s.accum = accum; s.sgpr = sgpr; s._l = 0
    def e(s, txt, kind="other"):
        for l in txt.strip("\n").split("\n"):
            l = l.strip()
            if l: s.p.append(I(l, kind))
    def add(s, x):
        if isinstance(x, list): s.p.extend(x)
        else: s.p.append(x)
    def lab(s, b="L"):
        s._l += 1; return f"{s.name}_{b}{s._l}"
    def finish(s):
        p = resolve(s.p)
        check_lds_raw(p)
        p, n = pad_hazards(p)
        s.final = p; s.npad = n
    def text(s):
        s.finish()
        body = "\n".join(x.t for x in s.final)
        return f".globl {s.name}\n.p2align 8\n.type {s.name},@function\n{s.name}:\n{body}\n"
    def desc(s):
        return (f".amdhsa_kernel {s.name}\n  .amdhsa_next_free_vgpr {s.vgpr}\n  .amdhsa_next_free_sgpr {s.sgpr}\n"
                f"  .amdhsa_accum_offset {s.accum}\n  .amdhsa_group_segment_fixed_size 0\n  .amdhsa_kernarg_size 112\n"
                f"  .amdhsa_user_sgpr_count 2\n  .amdhsa_user_sgpr_kernarg_segment_ptr 1\n  .amdhsa_system_sgpr_workgroup_id_x 1\n"
                f".end_amdhsa_kernel\n")

def build(launches, kernels, header=""):
    out = [header.rstrip("\n")] if header else []
    for (k, g, b, lds) in launches:
        out.append(f"; @launch kernel={k.name} grid=({g},1,1) block=({b},1,1) lds={lds}")
    out.append('.amdgcn_target "amdgcn-amd-amdhsa--gfx950"')
    out.append(MACROS)
    out.append(".text")
    for k in kernels: out.append(k.text())
    out.append('.section .rodata,"a"')
    for k in kernels: out.append(".p2align 6\n" + k.desc())
    return "\n".join(out)

WS_MOD = 0
WS_H1 = 0x10000
WS_X1 = 0x300000
WS_H2 = 0x600000
WS_PART = 0x1000000
ACT_BYTES = 2048 * 576 * 2
WS_STAMP = 0x8000000
```

```python
from fw import *
from sched import *
from kb import lane_consts, tr_addrs_F

TH = 24.0

def gen_ka(name="ka_kernel", stamps=False, R=6, cap=8, acap=8, th=TH, dmaspace=6):
    k = Kern(name)
    SLOT = 16384; NS = 8
    sQ, sK, sV, sO, sH, sP = 8, 12, 16, 20, 24, 28
    sQoff, sKoff, sVoff, sOoff, sHoff, sPoff, sM0, sWave = 32, 33, 34, 35, 36, 37, 38, 39
    vDq, vDk, vDo = 1, 5, 9
    vT = (13, 17); vK = (21, 25); vL0, vL1 = 29, 30
    CI = lambda hm: V(32 + 4 * hm, 4)
    ONES = V(48, 4)
    MX = lambda hm: V(52 + hm)
    t = [56, 57, 58, 59, 252, 253, 254, 255]
    Q = lambda h, mb, s: V(60 + ((h * 2 + mb) * 4 + s) * 4, 4)
    S = lambda j, kb, hm: V(124 + (j % 2) * 64 + (kb * 4 + hm) * 4, 4)
    QA = lambda nb, mb: V(124 + (nb * 2 + mb) * 4, 4)
    O = lambda hm, db: A((hm * 8 + db) * 4, 4)
    LS = lambda hm: A(128 + hm * 4, 4)
    Bf = lambda s, mb: A((s * 2 + mb) * 4, 4)
    ring = [A(144 + 4 * i, 4) for i in range(R)]
    done = k.lab("done")
    k.e(f"""
    s_cmp_ge_u32 s2, 256
    s_cbranch_scc1 {done}
    s_load_dwordx8 s[44:51], s[0:1], {KA['kc']}
    s_load_dwordx2 s[52:53], s[0:1], {KA['ws']}
    v_lshrrev_b32 v{t[0]}, 6, v0
    s_and_b32 s40, s2, 7
    s_lshl_b32 s40, s40, 1
    v_readfirstlane_b32 s{sWave}, v{t[0]}
    s_bfe_u32 s41, s2, 0x10003
    s_add_u32 s40, s40, s41
    s_lshr_b32 s41, s2, 4
    """)
    vl, vg, vr, vc = t[0], t[1], t[2], t[3]
    a, b, c_, d = t[4], t[5], t[6], t[7]
    lane_consts(k, vl, vg, vr, vc)
    k.e(f"""
    s_lshl_b32 s{sM0}, s{sWave}, 12
    s_lshl_b32 s{sQoff}, s40, 9
    s_lshl_b32 s42, s{sWave}, 7
    s_add_u32 s{sQoff}, s{sQoff}, s42
    s_lshl_b32 s42, s40, 11
    s_add_u32 s42, s42, 1536
    s_and_b32 s43, s{sWave}, 1
    s_lshl_b32 s43, s43, 5
    s_add_u32 s42, s42, s43
    s_lshl_b32 s42, s42, 8
    s_lshr_b32 s43, s{sWave}, 1
    s_lshl_b32 s43, s43, 7
    s_add_u32 s{sKoff}, s42, s43
    s_mov_b32 s{sVoff}, s{sKoff}
    s_lshl_b32 s42, s40, 8
    s_lshl_b32 s43, s{sWave}, 5
    s_add_u32 s42, s42, s43
    s_mul_i32 s{sOoff}, s42, 1152
    s_lshl_b32 s43, s41, 3
    s_lshl_b32 s42, s{sWave}, 1
    s_add_u32 s43, s43, s42
    s_mul_i32 s{sHoff}, s43, 18432
    s_mul_i32 s42, s40, {ACT_BYTES}
    s_add_u32 s{sPoff}, s{sHoff}, s42
    v_lshlrev_b32 v{vL0}, 4, v{vl}
    v_add_u32 v{vL1}, 18432, v{vL0}
    v_lshrrev_b32 v{a}, 3, v{vl}
    v_and_b32 v{b}, 7, v{vl}
    v_lshlrev_b32 v{c_}, 1, v{vg}
    v_xor_b32 v{b}, v{b}, v{c_}
    v_xor_b32 v{c_}, 1, v{b}
    v_lshlrev_b32 v{b}, 4, v{b}
    v_lshlrev_b32 v{c_}, 4, v{c_}
    """)
    for j in range(4):
        k.e(f"""
        v_lshl_add_u32 v{vDq+j}, v{a}, 13, v{b if j % 2 == 0 else c_}
        v_add_u32 v{vDq+j}, {j*(65536-1024)}, v{vDq+j}
        """)
    k.e(f"""
    s_waitcnt lgkmcnt(0)
    s_mov_b32 s{sQ}, s48
    s_mov_b32 s{sQ+1}, s49
    s_mov_b32 s{sQ+2}, {576*4096*2}
    s_mov_b32 s{sQ+3}, 0x00020000
    s_add_u32 s{sH}, s52, {WS_H1}
    s_addc_u32 s{sH+1}, s53, 0
    s_mov_b32 s{sH+2}, {ACT_BYTES}
    s_mov_b32 s{sH+3}, 0x00020000
    s_mov_b32 s{sK}, s44
    s_mov_b32 s{sK+1}, s45
    s_mov_b32 s{sK+2}, {16*2048*128*2}
    s_mov_b32 s{sK+3}, 0x00020000
    s_mov_b32 s{sV}, s46
    s_mov_b32 s{sV+1}, s47
    s_mov_b32 s{sV+2}, {16*2048*128*2}
    s_mov_b32 s{sV+3}, 0x00020000
    s_mov_b32 s{sO}, s50
    s_mov_b32 s{sO+1}, s51
    s_mov_b32 s{sO+2}, {576*4096*2}
    s_mov_b32 s{sO+3}, 0x00020000
    s_add_u32 s{sP}, s52, {WS_PART}
    s_addc_u32 s{sP+1}, s53, 0
    s_mov_b32 s{sP+2}, {ACT_BYTES*16}
    s_mov_b32 s{sP+3}, 0x00020000
    """)
    tiles = [("q", i) for i in range(18)] + [("k", 0)]
    for j in range(7): tiles += [("k", j + 1), ("v", j)]
    tiles += [("v", 7)] + [("o", i) for i in range(18)]
    tidx = {x: i for i, x in enumerate(tiles)}
    def dmat(tl):
        if tl >= len(tiles): return []
        kind, i = tiles[tl]
        L = [salu(f"s_add_u32 m0, s{sM0}, {(tl % NS) * SLOT}")]
        vd, srd, so = dict(q=(vDq, sQ, sQoff), k=(vDk, sK, sKoff), v=(vDk, sV, sVoff), o=(vDo, sO, sOoff))[kind]
        for j in range(4): L.append(dma(V(vd + j), srd, f"s{so}", j * 1024, ("T", tl)))
        if kind == "q":
            L.append(salu(f"s_add_u32 s{so}, s{so}, {32*8192}"))
            L += [gload(Bf(i, 0), V(vL0), sH, f"s{sHoff}", 0, ("T", tl)), gload(Bf(i, 1), V(vL1), sH, f"s{sHoff}", 0, ("T", tl)),
                  salu(f"s_add_u32 s{sHoff}, s{sHoff}, 1024")]
        elif kind in "kv": L.append(salu(f"s_add_u32 s{so}, s{so}, 16384"))
        else:
            L.append(salu(f"s_add_u32 s{so}, s{so}, {128*1152}") if i % 2 == 0 else salu(f"s_sub_u32 s{so}, s{so}, {128*1152-128}"))
        return L
    if stamps:
        k.e("s_memtime s[80:81]\ns_memrealtime s[78:79]")
    for tl in range(NS - 1): k.add(dmat(tl))
    for j in range(4):
        k.e(f"""
        v_lshl_add_u32 v{vDk+j}, v{a}, 8, v{b if j % 2 == 0 else c_}
        v_add_u32 v{vDk+j}, {j*1024}, v{vDk+j}
        v_mul_u32_u24 v{vDo+j}, 1152, v{a}
        v_add_u32 v{vDo+j}, v{vDo+j}, v{b if j % 2 == 0 else c_}
        v_add_u32 v{vDo+j}, {j*(9216-1024)}, v{vDo+j}
        """)
    tr_addrs_F(k, vT[0], vg, vr, vc, a, b, c_)
    k.e(f"""
    v_and_b32 v{a}, 15, v{vl}
    v_and_b32 v{b}, 6, v{a}
    v_lshrrev_b32 v{c_}, 3, v{a}
    v_or_b32 v{b}, v{b}, v{c_}
    v_lshrrev_b32 v{c_}, 1, v{vg}
    v_xor_b32 v{b}, v{b}, v{c_}
    v_lshlrev_b32 v{a}, 7, v{a}
    v_and_b32 v{c_}, 1, v{vg}
    v_lshl_add_u32 v{a}, v{c_}, 3, v{a}
    """)
    for u in range(4):
        k.e(f"""
        v_xor_b32 v{c_}, {u<<1}, v{b}
        v_lshl_add_u32 v{vK[0]+u}, v{c_}, 4, v{a}
        v_add_u32 v{vK[1]+u}, 0x10000, v{vK[0]+u}
        v_add_u32 v{vT[1]+u}, 0x10000, v{vT[0]+u}
        v_mov_b32 v{ONES.lo+u}, 0x3f803f80
        """)
    k.e(f"s_mov_b32 s60, 0x{int.from_bytes(__import__('struct').pack('<f', th), 'little'):08x}")
    k.e("s_nop 1")
    def slot(tl): return (tl % NS) // 4, ((tl % NS) % 4) * SLOT
    def trfrag(tl, nb3, off):
        hi, so = slot(tl)
        return lambda dst: [dsr_tr(dst.sub(0, 2), V(vT[hi] + nb3), so + off), dsr_tr(dst.sub(2, 2), V(vT[hi] + nb3), so + off + 2048)]
    P = Pipe(ring, cap=cap)
    dm = P.stream("dma"); ex = P.stream("exp"); cv = P.stream("cvt"); mx = P.stream("max"); ep = P.stream("ep")
    for tl in range(len(tiles)): P.tile_tags[tl] = [("T", tl)]
    qlast = {}
    for tl in range(18):
        for nb in range(16):
            f = P.frag(tl, trfrag(tl, nb & 3, (nb >> 2) * 4096))
            for mb in range(2):
                qlast[(nb, mb)] = P.m(f, lambda Ar, nb=nb, mb=mb, tl=tl: mfma(QA(nb, mb), Ar, Bf(tl, mb), 0 if tl == 0 else None))
    nq = len(P.mf)
    for h in range(2):
        for s in range(4):
            for mb in range(2):
                for hb in range(2):
                    nb = h * 8 + s * 2 + hb
                    src = QA(nb, mb)
                    for q in range(2):
                        cv.append(Item(valu("v_cvt_pk_bf16_f32", Q(h, mb, s)[2 * hb + q], src[2 * q], src[2 * q + 1]), qlast[(nb, mb)] + 4, deadline=nq - 1, slack=4))
    def qk(j):
        tl = tidx[("k", j)]; hi, so = slot(tl)
        lastm = {}
        for kb in range(4):
            for s in range(4):
                def rdfn(dst, kb=kb, s=s):
                    o = so + (s >> 1) * 8192 + kb * 2048
                    return [dsr64(dst.sub(0, 2), V(vK[hi] + 2 * (s & 1)), o), dsr64(dst.sub(2, 2), V(vK[hi] + 2 * (s & 1) + 1), o)]
                f = P.frag(tl, rdfn)
                for hm in range(4):
                    def fn(Ar, kb=kb, s=s, hm=hm):
                        c = (0 if j == 0 else CI(hm)) if s == 0 else None
                        x = mfma(S(j, kb, hm), Ar, Q(hm >> 1, hm & 1, s), c); x.tag = ("qk", j, kb, hm); return x
                    lastm[(kb, hm)] = P.m(f, fn)
        return lastm
    Pk = lambda j, ks, hm: S(j, 2 * ks, hm)
    def pv(j):
        tl = tidx[("v", j)]
        firstm = {}; lastm = {}
        for ks in range(2):
            for hm in range(4):
                def fn(Ar, ks=ks, hm=hm):
                    x = mfma(LS(hm), ONES, Pk(j, ks, hm), 0 if (j == 0 and ks == 0) else None); x.tag = ("pv", j, ks, hm); return x
                firstm[(ks, hm)] = P.m(None, fn)
            for db in range(8):
                f = P.frag(tl, trfrag(tl, db & 3, (db >> 2) * 8192 + ks * 4096))
                for hm in range(4):
                    def fn(Ar, ks=ks, hm=hm, db=db):
                        x = mfma(O(hm, db), Ar, Pk(j, ks, hm), 0 if (j == 0 and ks == 0) else None); x.tag = ("pv", j, ks, hm); return x
                    lastm[(db, hm)] = P.m(f, fn)
        return firstm, lastm
    def rowmax_xlane(regs, tmp):
        L = []
        for op in ("v_permlane16_swap_b32", "v_permlane32_swap_b32"):
            for r, tt in zip(regs, tmp): L.append(valu("v_mov_b32", tt, r))
            for r, tt in zip(regs, tmp): L.append(I(f"{op} {r}, {tt}", "valu", rd=(r, tt), wr=(r, tt)))
            for r, tt in zip(regs, tmp): L.append(valu("v_max_f32", r, r, tt))
        return L
    def max_items(j, lastm, dl):
        items = []
        for kb in range(4):
            for hm in range(4):
                s_ = S(j, kb, hm); e = lastm[(kb, hm)] + 4
                if kb == 0:
                    items.append(Item(valu("v_max3_f32", MX(hm), s_[0], s_[1], s_[2]), e, deadline=dl, slack=4))
                    items.append(Item(valu("v_max_f32", MX(hm), MX(hm), s_[3]), e, deadline=dl, slack=4))
                else:
                    items.append(Item(valu("v_max3_f32", MX(hm), MX(hm), s_[0], s_[1]), e, deadline=dl, slack=4))
                    items.append(Item(valu("v_max3_f32", MX(hm), MX(hm), s_[2], s_[3]), e, deadline=dl, slack=4))
        return items
    def exp_items(j, gate, dls):
        for ks in range(2):
            for hm in range(4):
                for hb in range(2):
                    s_ = S(j, 2 * ks + hb, hm)
                    for q in range(2):
                        es = []
                        for r in (2 * q, 2 * q + 1):
                            x = valu("v_exp_f32", s_[r], s_[r], trans=True); x.tag = ("exp", j, s_[r])
                            it = Item(x, -1, deadline=dls[(ks, hm)] - 3, after=gate(hm, s_[r])); ex.append(it); es.append(it)
                        x = valu("v_cvt_pk_bf16_f32", Pk(j, ks, hm)[2 * hb + q], s_[2 * q], s_[2 * q + 1]); x.tag = ("cvt", j, ks, hm, Pk(j, ks, hm)[2 * hb + q], s_[2 * q], s_[2 * q + 1])
                        cv.append(Item(x, -1, deadline=dls[(ks, hm)] - 2, after=tuple(es)))
    lq = {0: qk(0)}
    n0 = len(P.mf)
    lq[1] = qk(1)
    tmpm = [V(x) for x in t[:4]]
    for it in max_items(0, lq[0], n0 - 1): mx.append(it)
    pre = rowmax_xlane([MX(hm) for hm in range(4)], tmpm)
    for hm in range(4):
        for r in range(4): pre.append(valu("v_sub_f32", CI(hm)[r], 0, MX(hm)))
    P.pre[n0] = pre
    subs0 = {}
    for ks in range(2):
        for hm in range(4):
            for hb in range(2):
                s_ = S(0, 2 * ks + hb, hm)
                for r in range(4):
                    it = Item(valu("v_add_f32", s_[r], s_[r], CI(hm)[0]), n0, deadline=n0 + 58 + 30 * ks); mx.append(it); subs0[s_[r].lo] = it
    fp = {}; lp = {}
    chk = {}
    for j in range(8):
        fp[j], lp[j] = pv(j)
        if j + 2 < 8: lq[j + 2] = qk(j + 2)
    exp_items(0, lambda hm, r: (subs0[r.lo],), fp[0])
    slowlabs = {}
    for j in range(1, 8):
        endqk = max(lq[j].values())
        dl = endqk + 8
        for it in max_items(j, lq[j], dl): mx.append(it)
        mx.append(Item(valu("v_max3_f32", tmpm[0], MX(0), MX(1), MX(2)), -1, deadline=dl + 1))
        mx.append(Item(valu("v_max_f32", tmpm[0], tmpm[0], MX(3)), -1, deadline=dl + 1))
        mx.append(Item(I(f"v_cmp_lt_f32 vcc, s60, {tmpm[0]}", "valu", rd=(tmpm[0],)), -1, deadline=dl + 2))
        sl = k.lab("slow"); bk = k.lab("back"); slowlabs[j] = (sl, bk)
        x = I(f"s_cbranch_vccnz {sl}\n{bk}:", "other"); x.tag = ("chk", j)
        chk[j] = Item(x, -1, deadline=dl + 3); mx.append(chk[j])
        exp_items(j, lambda hm, r, j=j: (chk[j],), fp[j])
    na = len(P.mf)
    for i in range(nq, na): P.capov[i] = acap
    OB = Q
    inv = [MX(hm) for hm in range(4)]
    invit = {}
    for hm in range(4):
        a1 = Item(valu("v_accvgpr_read_b32", inv[hm], LS(hm)[0]), fp[7][(1, hm)] + 4, deadline=na - 1, slack=4); ep.append(a1)
    for hm in range(4):
        a2 = Item(valu("v_rcp_f32", inv[hm], inv[hm], trans=True), -1, deadline=na - 1); ep.append(a2)
    tt = [V(x) for x in t]
    for db in range(8):
        for hm in range(4):
            o = O(hm, db); e = lp[7][(db, hm)] + 4
            tq = tt[(hm % 2) * 4:(hm % 2) * 4 + 4]
            for r in range(4): ep.append(Item(valu("v_accvgpr_read_b32", tq[r], o[r]), e, deadline=na - 1, slack=4))
            for r in range(4): ep.append(Item(valu("v_mul_f32", tq[r], tq[r], inv[hm]), e, deadline=na - 1, slack=4))
            dst = OB(hm >> 1, hm & 1, db >> 1)
            for q in range(2): ep.append(Item(valu("v_cvt_pk_bf16_f32", dst[2 * (db & 1) + q], tq[2 * q], tq[2 * q + 1]), e, deadline=na - 1, slack=4))
    acc2 = lambda pair, nbl, mb: V(124 + ((pair * 2 + nbl) * 2 + mb) * 4, 4)
    pk = lambda pair, mb: V(156 + (pair * 2 + mb) * 4, 4)
    for ch in range(9):
        for h in range(2):
            tl = tidx[("o", 2 * ch + h)]
            for pair in range(2):
                for ks in range(4):
                    for nbl in range(2):
                        f = P.frag(tl, trfrag(tl, pair * 2 + nbl, ks * 4096))
                        for mb in range(2):
                            P.m(f, lambda Ar, pair=pair, nbl=nbl, mb=mb, ks=ks, h=h: mfma(acc2(pair, nbl, mb), Ar, OB(h, mb, ks), 0 if (ks == 0 and h == 0) else None))
                if h == 1:
                    lastm = len(P.mf) - 1
                    for mb in range(2):
                        for nbl in range(2):
                            s_ = acc2(pair, nbl, mb)
                            for q in range(2):
                                ep.append(Item(valu("v_cvt_pk_bf16_f32", pk(pair, mb)[2 * nbl + q], s_[2 * q], s_[2 * q + 1]), lastm + 4, deadline=lastm + 15))
                        ep.append(Item(gstore(pk(pair, mb), V(vL0 if mb == 0 else vL1), sP, f"s{sPoff}", 0), lastm + 4, deadline=lastm + 24))
                    ep.append(Item(salu(f"s_add_u32 s{sPoff}, s{sPoff}, 1024"), lastm + 4, deadline=lastm + 24))
    if stamps:
        P.pre[nq] = [I("s_memtime s[82:83]")] + P.pre.get(nq, [])
        P.pre[na] = [I("s_memtime s[84:85]")] + P.pre.get(na, [])
    P.plan()
    for T in range(1, len(tiles)):
        nt = T - 2 + NS
        if nt >= NS - 1:
            sp = dmaspace // 2 if tiles[T - 1][0] in "qo" else dmaspace
            for q, ins in enumerate(dmat(nt)): dm.append(Item(ins, P.eT[T] + q * sp, bar=T))
    body = P.emit()
    k.add(body)
    if stamps:
        k.e(f"""
        s_waitcnt vmcnt(0)
        s_memtime s[86:87]
        s_memrealtime s[88:89]
        s_waitcnt lgkmcnt(0)
        s_add_u32 s8, s52, {WS_STAMP}
        s_addc_u32 s9, s53, 0
        s_mov_b32 s10, 0x100000
        s_lshl_b32 s50, s2, 2
        s_add_u32 s50, s50, s{sWave}
        s_lshl_b32 s50, s50, 4
        s_sub_u32 s82, s82, s80
        s_sub_u32 s84, s84, s80
        s_sub_u32 s86, s86, s80
        s_sub_u32 s88, s88, s78
        v_mov_b32 v4, s82
        v_mov_b32 v5, s84
        v_mov_b32 v6, s86
        v_mov_b32 v7, s88
        v_mov_b32 v8, 0
        buffer_store_dwordx4 v[4:7], v8, s[8:11], s50 offen
        """)
    k.e(f"{done}:\ns_endpgm")
    for j in range(1, 8):
        pos = next(i for i, x in enumerate(body) if isinstance(x, I) and x.tag == ("chk", j))
        before = [x for x in body[:pos] if isinstance(x, I) and x.tag]
        after = [x for x in body[pos:] if isinstance(x, I) and x.tag]
        assert not any(x.tag[0] == "qk" and x.tag[1] == j + 1 for x in before)
        assert not any(x.tag[0] == "qk" and x.tag[1] == j for x in after)
        assert not any(x.tag[0] in ("pv", "exp", "cvt") and x.tag[1] == j - 2 for x in after)
        exped = {x.tag[2].lo for x in before if x.tag[0] == "exp" and x.tag[1] == j - 1}
        cvted = {}
        dead = set()
        for x in before:
            if x.tag[0] == "cvt" and x.tag[1] == j - 1:
                cvted[x.tag[4].lo] = (x.tag[2], x.tag[3]); dead |= {x.tag[5].lo, x.tag[6].lo}
        live_p = {(x.tag[2], x.tag[3]) for x in after if x.tag[0] == "pv" and x.tag[1] == j - 1}
        started = {(x.tag[2], x.tag[3]) for x in before if x.tag[0] == "pv" and x.tag[1] == j - 1}
        sl, bk = slowlabs[j]
        L = [I(f"{sl}:"), I("s_nop 15", "nop")]
        L += rowmax_xlane([MX(hm) for hm in range(4)], tmpm)
        F = tmpm; T0, T1 = V(t[4]), V(t[5])
        for hm in range(4):
            L.append(valu("v_max_f32", MX(hm), 0, MX(hm)))
            L.append(valu("v_ceil_f32", MX(hm), MX(hm)))
            L.append(valu("v_exp_f32_e64", F[hm], f"-{MX(hm)}", trans=True)); L[-1].rd |= MX(hm).set()
            for r in range(4): L.append(valu("v_sub_f32", CI(hm)[r], CI(hm)[r], MX(hm)))
            for kb in range(4):
                for r in range(4): L.append(valu("v_sub_f32", S(j, kb, hm)[r], S(j, kb, hm)[r], MX(hm)))
            for kb in range(4):
                for r in range(4):
                    reg = S(j - 1, kb, hm)[r]
                    if reg.lo in cvted:
                        if cvted[reg.lo] in live_p:
                            L.append(valu("v_lshlrev_b32", T0, 16, reg))
                            L.append(valu("v_and_b32", T1, "0xffff0000", reg))
                            L.append(valu("v_mul_f32", T0, T0, F[hm])); L.append(valu("v_mul_f32", T1, T1, F[hm]))
                            L.append(valu("v_cvt_pk_bf16_f32", reg, T0, T1))
                    elif reg.lo in dead: pass
                    elif reg.lo in exped: L.append(valu("v_mul_f32", reg, reg, F[hm]))
                    else: L.append(valu("v_sub_f32", reg, reg, MX(hm)))
            accs = [LS(hm)] + [O(hm, db) for db in range(8)]
            for ac in accs:
                written = any(x.kind == "mfma" and x.wr == ac.set() and x.tag and x.tag[0] == "pv" for x in before)
                if not written: continue
                for r in range(4):
                    L.append(valu("v_accvgpr_read_b32", T0, ac[r])); L.append(valu("v_mul_f32", T0, T0, F[hm])); L.append(valu("v_accvgpr_write_b32", ac[r], T0))
        L += [I("s_nop 1", "nop"), I(f"s_branch {bk}")]
        k.add(L)
    return k, (k, 256, 256, NS * SLOT)

if __name__ == "__main__":
    for nm, kw in dict(base={}, th0=dict(th=0.0)).items():
        k, l = gen_ka(stamps=True, **kw)
        open(f"t_ka_{nm}.s", "w").write(build([l], [k]))
        print(nm, "pads", k.npad, "instrs", len(k.final))
```

```python
from fw import *
from sched import *

def stamp(k, i, sreg=90):
    k.e(f"s_memtime s[{sreg+2*i}:{sreg+2*i+1}]")

def lane_consts(k, vl, vg, vr, vc):
    k.e(f"""
    v_and_b32 v{vl}, 63, v0
    v_lshrrev_b32 v{vg}, 4, v{vl}
    v_bfe_u32 v{vr}, v{vl}, 2, 2
    v_and_b32 v{vc}, 3, v{vl}
    """)

def tr_addrs_F(k, dst, vg, vr, vc, t0, t1, t2):
    k.e(f"""
    v_lshl_add_u32 v{t0}, v{vg}, 2, v{vr}
    v_bfe_u32 v{t1}, v{t0}, 1, 2
    v_lshlrev_b32 v{t1}, 1, v{t1}
    v_lshrrev_b32 v{t2}, 1, v{vg}
    v_or_b32 v{t1}, v{t1}, v{t2}
    v_lshrrev_b32 v{t2}, 1, v{vc}
    v_xor_b32 v{t1}, v{t1}, v{t2}
    v_lshlrev_b32 v{t0}, 7, v{t0}
    v_and_b32 v{t2}, 1, v{vc}
    v_lshl_add_u32 v{t0}, v{t2}, 3, v{t0}
    """)
    for nb in range(4):
        k.e(f"""
        v_xor_b32 v{t2}, {nb<<1}, v{t1}
        v_lshl_add_u32 v{dst+nb}, v{t2}, 4, v{t0}
        """)

def gen_kb(name="kb_kernel", stamps=False, R=6, cap=8, nodma=False, nostore=False, dmaspace=4):
    k = Kern(name)
    SLOT = 36864; NS = 4
    sW, sD, sH, sP = 8, 12, 16, 20
    sWoff, sDoff, sHoff, sPoff, sM0, sWave = 24, 25, 26, 27, 28, 29
    vD1 = 1; vD2 = 10; vE, vO = 19, 20; vT = 21; vL0, vL1 = 25, 26
    vE2, vO2, vT2 = 248, 249, 250
    t = list(range(28, 40))
    G = lambda nb, mb: V(40 + (nb * 2 + mb) * 4, 4)
    U = lambda nb, mb: V(184 + (nb * 2 + mb) * 4, 4) if nb < 8 else A((((nb - 8) * 2) + mb) * 4, 4)
    ring = [A(80 + 4 * i, 4) for i in range(R)]
    Bf = lambda s, mb: A(112 + (s * 2 + mb) * 4, 4)
    done = k.lab("done")
    k.e(f"""
    s_cmp_ge_u32 s2, 256
    s_cbranch_scc1 {done}
    s_load_dwordx4 s[32:35], s[0:1], {KA['wg']}
    s_load_dwordx2 s[36:37], s[0:1], {KA['wd']}
    s_load_dwordx2 s[38:39], s[0:1], {KA['ws']}
    v_lshrrev_b32 v{t[0]}, 6, v0
    s_and_b32 s40, s2, 7
    s_lshl_b32 s40, s40, 1
    v_readfirstlane_b32 s{sWave}, v{t[0]}
    s_bfe_u32 s41, s2, 0x10003
    s_add_u32 s40, s40, s41
    s_lshr_b32 s41, s2, 4
    """)
    vl, vg, vr, vc = t[0], t[1], t[2], t[3]
    lane_consts(k, vl, vg, vr, vc)
    k.e(f"""
    s_mul_i32 s{sM0}, s{sWave}, 9216
    s_lshr_b32 s42, s{sWave}, 1
    s_mul_i32 s{sWoff}, s42, {16*9216}
    s_mul_i32 s43, s40, 576
    s_add_u32 s{sWoff}, s{sWoff}, s43
    s_mul_i32 s43, s40, 288
    s_mul_i32 s44, s{sWave}, 72
    s_add_u32 s43, s43, s44
    s_mul_i32 s{sDoff}, s43, 1152
    s_lshl_b32 s43, s41, 3
    s_lshl_b32 s44, s{sWave}, 1
    s_add_u32 s43, s43, s44
    s_mul_i32 s{sHoff}, s43, 18432
    s_mul_i32 s44, s40, {ACT_BYTES}
    s_add_u32 s{sPoff}, s{sHoff}, s44
    s_and_b32 s45, s{sWave}, 1
    s_cmp_eq_u32 s45, 0
    s_waitcnt lgkmcnt(0)
    s_cselect_b32 s{sW}, s32, s34
    s_cselect_b32 s{sW+1}, s33, s35
    s_mov_b32 s{sW+2}, {576*4608*2}
    s_mov_b32 s{sW+3}, 0x00020000
    s_mov_b32 s{sD}, s36
    s_mov_b32 s{sD+1}, s37
    s_mov_b32 s{sD+2}, {576*4608*2}
    s_mov_b32 s{sD+3}, 0x00020000
    s_add_u32 s{sH}, s38, {WS_H2}
    s_addc_u32 s{sH+1}, s39, 0
    s_mov_b32 s{sH+2}, {ACT_BYTES}
    s_mov_b32 s{sH+3}, 0x00020000
    s_add_u32 s{sP}, s38, {WS_PART}
    s_addc_u32 s{sP+1}, s39, 0
    s_mov_b32 s{sP+2}, {ACT_BYTES*16}
    s_mov_b32 s{sP+3}, 0x00020000
    s_movk_i32 s46, 1821
    s_movk_i32 s47, 9216
    v_lshlrev_b32 v{vL0}, 4, v{vl}
    v_add_u32 v{vL1}, 18432, v{vL0}
    """)
    a, b, c_, d = t[4], t[5], t[6], t[7]
    for j in range(9):
        k.e(f"""
        v_add_u32 v{a}, {64*j}, v{vl}
        v_mul_u32_u24 v{b}, s46, v{a}
        v_lshrrev_b32 v{b}, 16, v{b}
        v_mul_u32_u24 v{c_}, 36, v{b}
        v_sub_u32 v{a}, v{a}, v{c_}
        v_bfe_u32 v{c_}, v{b}, 2, 1
        v_lshlrev_b32 v{c_}, 1, v{c_}
        v_xor_b32 v{a}, v{a}, v{c_}
        v_lshlrev_b32 v{a}, 4, v{a}
        v_mad_u32_u24 v{vD1+j}, v{b}, s47, v{a}
        """)
        if j % 4: k.e(f"v_subrev_u32 v{vD1+j}, {1024*(j%4)}, v{vD1+j}")
    def dma1(tile):
        L = []
        for j in range(9):
            if j % 4 == 0: L.append(salu(f"s_add_u32 m0, s{sM0}, {(tile % NS) * SLOT + (j // 4) * 4096}"))
            L.append(dma(V(vD1 + j), sW, f"s{sWoff}", (j % 4) * 1024, ("T", tile)))
        L.append(salu(f"s_add_u32 s{sWoff}, s{sWoff}, {32*9216}"))
        return L
    def bload(s):
        return [gload(Bf(s, 0), V(vL0), sH, f"s{sHoff}", 0, ("B", s)), gload(Bf(s, 1), V(vL1), sH, f"s{sHoff}", 0, ("B", s)),
                salu(f"s_add_u32 s{sHoff}, s{sHoff}, 1024")]
    def dma2(tile):
        L = []
        for j in range(9):
            if j % 4 == 0: L.append(salu(f"s_add_u32 m0, s{sM0}, {(tile % NS) * SLOT + (j // 4) * 4096}"))
            L.append(dma(V(vD2 + j), sD, f"s{sDoff}", (j % 4) * 1024, ("T", tile)))
        L.append(salu(f"s_add_u32 s{sDoff}, s{sDoff}, 128"))
        return L
    def dmat(tile):
        if tile < 18: return dma1(tile) + bload(tile)
        if tile < 27: return dma2(tile)
        return []
    if stamps:
        stamp(k, 0)
        k.e("s_memrealtime s[88:89]")
    for tl in range(NS - 1):
        k.add(dmat(tl))
    k.e(f"""
    v_lshl_add_u32 v{a}, v{vg}, 2, v{vr}
    v_mul_u32_u24 v{a}, 576, v{a}
    v_lshl_add_u32 v{a}, v{vc}, 3, v{a}
    v_and_b32 v{b}, 1, v{vg}
    v_lshlrev_b32 v{b}, 5, v{b}
    v_add_u32 v{vE}, v{a}, v{b}
    v_sub_u32 v{vO}, v{a}, v{b}
    """)
    tr_addrs_F(k, vT, vg, vr, vc, a, b, c_)
    for nb in range(4):
        k.e(f"v_add_u32 v{vT+nb}, {(18 % NS) * SLOT}, v{vT+nb}")
    k.e(f"""
    v_lshrrev_b32 v{a}, 3, v{vl}
    v_mul_u32_u24 v{a}, 1152, v{a}
    v_and_b32 v{b}, 7, v{vl}
    v_lshlrev_b32 v{c_}, 1, v{vg}
    v_xor_b32 v{b}, v{b}, v{c_}
    v_xor_b32 v{b}, s45, v{b}
    v_xor_b32 v{c_}, 1, v{b}
    v_lshl_add_u32 v{b}, v{b}, 4, v{a}
    v_lshl_add_u32 v{c_}, v{c_}, 4, v{a}
    """)
    for j in range(9):
        k.e(f"v_add_u32 v{vD2+j}, {9216*j - 1024*(j%4)}, v{b if j % 2 == 0 else c_}")
    k.e("s_nop 1")

    def slot_delta(tile):
        return SLOT if tile % NS else -(NS - 1) * SLOT
    P = Pipe(ring, cap=cap)
    dm = P.stream("dma")
    for tl in range(18):
        P.tile_tags[tl] = [("T", tl), ("B", tl)]
        fi = 0
        for nb in range(18):
            for mat in range(2):
                def rdfn(dst, nb=nb, mat=mat, tl=tl, fi=fi):
                    ad = V((vE, vE2)[tl % 2]) if nb % 2 == 0 else V((vO, vO2)[tl % 2])
                    L = []
                    o = mat * 9216 + nb * 32
                    return L + [dsr_tr(dst.sub(0, 2), ad, o), dsr_tr(dst.sub(2, 2), ad, o + 18432)]
                f = P.frag(tl, rdfn)
                for mb in range(2):
                    acc = (G if mat == 0 else U)(nb, mb)
                    i = P.m(f, lambda Ar, acc=acc, tl=tl, mb=mb: mfma(acc, Ar, Bf(tl, mb), 0 if tl == 0 else None))
                fi += 1
    n1 = len(P.mf)
    act = []
    for a_ in range(9):
        for mb in range(2):
            for hb in range(2):
                nb = 2 * a_ + hb
                g = G(nb, mb); u = U(nb, mb)
                if u.k == "a":
                    tmp = V(t[4] , 4)
                    for r in range(4): act.append(valu("v_accvgpr_read_b32", tmp[r], u[r]))
                    u = tmp
                for r in range(4): act.append(valu("v_max_f32", g[r], 0, g[r]))
                act.append(valu("v_pk_mul_f32", g.sub(0, 2), g.sub(0, 2), u.sub(0, 2)))
                act.append(valu("v_pk_mul_f32", g.sub(2, 2), g.sub(2, 2), u.sub(2, 2)))
                dst = G(2 * a_, mb)
                act.append(valu("v_cvt_pk_bf16_f32", dst[2 * hb], g[0], g[1]))
                act.append(valu("v_cvt_pk_bf16_f32", dst[2 * hb + 1], g[2], g[3]))
    H = lambda ks, mb: G(2 * ks, mb)
    acc2 = lambda pair, nbl, mb: V(184 + ((pair * 2 + nbl) * 2 + mb) * 4, 4)
    pk = lambda pair, mb: V(216 + (pair * 2 + mb) * 4, 4)
    ep = P.stream("ep")
    for ch in range(9):
        tl = 18 + ch
        P.tile_tags[tl] = [("T", tl)]
        fi = 0
        for pair in range(2):
            for ks in range(9):
                for nbl in range(2):
                    nb = pair * 2 + nbl
                    def rdfn(dst, nb=nb, ks=ks, tl=tl, fi=fi):
                        ad = V((vT, vT2)[tl % 2] + nb)
                        return [dsr_tr(dst.sub(0, 2), ad, ks * 4096), dsr_tr(dst.sub(2, 2), ad, ks * 4096 + 2048)]
                    f = P.frag(tl, rdfn)
                    for mb in range(2):
                        i = P.m(f, lambda Ar, pair=pair, nbl=nbl, mb=mb, ks=ks: mfma(acc2(pair, nbl, mb), Ar, H(ks, mb), 0 if ks == 0 else None))
                    fi += 1
            lastm = len(P.mf) - 1
            for mb in range(2):
                for nbl in range(2):
                    s_ = acc2(pair, nbl, mb)
                    ep.append(Item(valu("v_cvt_pk_bf16_f32", pk(pair, mb)[2 * nbl], s_[0], s_[1]), lastm + 4, deadline=lastm + 30))
                    ep.append(Item(valu("v_cvt_pk_bf16_f32", pk(pair, mb)[2 * nbl + 1], s_[2], s_[3]), lastm + 4, deadline=lastm + 30))
                if not nostore: ep.append(Item(gstore(pk(pair, mb), V(vL0 if mb == 0 else vL1), sP, f"s{sPoff}", 0), lastm + 4, deadline=lastm + 34))
            ep.append(Item(salu(f"s_add_u32 s{sPoff}, s{sPoff}, 1024"), lastm + 4, deadline=lastm + 34))
    P.pre[n1] = ([I(f"s_memtime s[92:93]")] if stamps else []) + act + ([I(f"s_memtime s[94:95]")] if stamps else [])
    P.plan()
    misc = P.stream("misc")
    for tl in range(1, 27):
        if tl == 18: continue
        dl = hex(slot_delta(tl) & 0xffffffff)
        pairs = [(vE, vE2), (vO, vO2)] if tl < 18 else [(vT + q, vT2 + q) for q in range(4)]
        for pr in pairs:
            e = P.lastrdT[tl - 2] + 1 if tl >= 2 else -1
            misc.append(Item(valu("v_add_u32", V(pr[tl % 2]), dl, V(pr[1 - tl % 2])), max(e, P.eT[tl - 1] + 12), deadline=P.eT[tl] - 2))
    for T in range(1, 27):
        nt = T - 2 + NS
        if nt >= NS - 1:
            for q, ins in enumerate(dmat(nt)):
                if nodma and ins.kind == "vmem" and ins.tag[0] == "T": continue
                dm.append(Item(ins, P.eT[T] + q * dmaspace, bar=T))
    k.add(P.emit())
    if stamps:
        k.e(f"""
        s_waitcnt vmcnt(0)
        s_memtime s[96:97]
        s_memrealtime s[98:99]
        s_waitcnt lgkmcnt(0)
        s_sub_u32 s88, s98, s88
        s_add_u32 s8, s38, {WS_STAMP}
        s_addc_u32 s9, s39, 0
        s_mov_b32 s10, 0x100000
        s_lshl_b32 s50, s2, 2
        s_add_u32 s50, s50, s{sWave}
        s_lshl_b32 s50, s50, 4
        s_sub_u32 s92, s92, s90
        s_sub_u32 s94, s94, s90
        s_sub_u32 s96, s96, s90
        v_mov_b32 v4, s92
        v_mov_b32 v5, s94
        v_mov_b32 v6, s96
        v_mov_b32 v7, s88
        v_mov_b32 v8, 0
        buffer_store_dwordx4 v[4:7], v8, s[8:11], s50 offen
        """)
    k.e(f"{done}:\ns_endpgm")
    return k, (k, 256, 256, NS * SLOT)

if __name__ == "__main__":
    for nm, kw in dict(base={}, nodma=dict(nodma=True), nodmast=dict(nodma=True, nostore=True), sp2=dict(dmaspace=2), r7=dict(R=7)).items():
        k, l = gen_kb(stamps=True, **kw)
        open(f"t_kb_{nm}.s", "w").write(build([l], [k]))
        print(nm, "pads", k.npad, "instrs", len(k.final))
```

```python
from fw import *

COST = dict(mfma=8, valu=4, trans=8, dsr=4, dsw=8, salu=4, vmem=4, vst=4, wait=4, other=4, nop=4)

class Item:
    __slots__ = ("ins", "earliest", "bar", "deadline", "after", "done", "slack")
    def __init__(s, ins, earliest=-1, bar=None, deadline=None, after=(), slack=0):
        s.ins = ins; s.earliest = earliest; s.bar = bar; s.deadline = deadline; s.after = after; s.done = None; s.slack = slack
def cost(ins):
    if isinstance(ins, (WaitVm, WaitLg, tuple)): return 4
    return COST[ins.kind]

class Pipe:
    def __init__(s, ring, cap=8, pairwait=2):
        s.ring = ring; s.mf = []; s.frags = []; s.streams = {}; s.prio = []
        s.cap = cap; s.pairwait = pairwait
        s.tile_tags = {}; s.pre = {}; s.capov = {}
    def frag(s, tile, rdfn):
        s.frags.append((tile, rdfn)); return len(s.frags) - 1
    def m(s, frag, fn):
        s.mf.append((frag, fn)); return len(s.mf) - 1
    def stream(s, name):
        if name not in s.streams: s.streams[name] = []; s.prio.append(name)
        return s.streams[name]
    def plan(s):
        Rn = len(s.ring)
        s.first = {}; s.last = {}
        for i, (f, _) in enumerate(s.mf):
            if f is None: continue
            s.first.setdefault(f, i); s.last[f] = i
        s.eT = {}; s.lastrdT = {}
        for f, (tile, _) in enumerate(s.frags):
            e = s.last[f - Rn] if f >= Rn else -1
            s.eT.setdefault(tile, e)
            s.lastrdT[tile] = e + 1
    def emit(s):
        s.plan()
        Rn = len(s.ring); first = s.first; last = s.last
        rd = []; sync = []
        prev_tile = None
        for f, (tile, rdfn) in enumerate(s.frags):
            e = last[f - Rn] if f >= Rn else -1
            if tile != prev_tile:
                sync.append(Item(WaitVm(s.tile_tags[tile]), e - 3, deadline=e - 2))
                sync.append(Item(("BAR", tile), e - 2, deadline=e - 1))
                prev_tile = tile
            for ins in rdfn(s.ring[f % Rn]):
                rd.append(Item(ins, e, bar=tile, deadline=first[f] - 1))
        out = []
        bars_done = set()
        streams = [("sync", sync), ("rd", rd)] + [(n, s.streams[n]) for n in s.prio]
        idx = {n: 0 for n, _ in streams}
        def put(it):
            it.done = len(out)
            if isinstance(it.ins, tuple):
                out.append(I("s_barrier", "other")); bars_done.add(it.ins[1]); return 4
            out.append(it.ins); return cost(it.ins)
        def fill(gap, budget):
            nds = 0
            for forced_only in (True, False):
                progress = True
                while progress:
                    progress = False
                    order = streams if forced_only else [streams[1], streams[0]] + streams[2:]
                    for n, st in order:
                        i = idx[n]
                        if i >= len(st): continue
                        it = st[i]
                        if it.earliest - it.slack > gap: continue
                        if it.bar is not None and it.bar not in bars_done: continue
                        if any(a.done is None or a.done >= len(out) - 1 for a in it.after): continue
                        forced = False
                        for j in range(i, min(i + 8, len(st))):
                            if st[j].deadline is not None and st[j].deadline <= gap: forced = True
                        if forced_only and not forced: continue
                        if it.earliest > gap and not forced: continue
                        c = cost(it.ins)
                        isds = isinstance(it.ins, I) and it.ins.kind in ("dsr", "dsw")
                        if isds and nds >= 1 and 0 <= gap < 10**8 and not forced: continue
                        if forced or c <= budget:
                            if isds: nds += 1
                            budget -= put(it); idx[n] += 1; progress = True
                            break
            return budget
        fill(-1, 64)
        carry = 0
        PW = s.pairwait
        for i, (f, fn) in enumerate(s.mf):
            for x in s.pre.get(i, []): out.append(x)
            if f is not None and first[f] == i:
                need = [s.ring[f % Rn]]
                if f % PW == 0:
                    for q in range(1, PW):
                        if f + q >= len(s.frags): break
                        nxt = s.ring[(f + q) % Rn]
                        pend = any((it.ins.wr & nxt.set()) and it.deadline == first[f + q] - 1 for it in rd[idx["rd"]:idx["rd"] + 2 * Rn + 4])
                        if pend: break
                        need.append(nxt)
                out.append(WaitLg(need))
            out.append(fn(s.ring[f % Rn]) if f is not None else fn(None))
            extra = 0
            if i + 1 < len(s.mf):
                f2 = s.mf[i + 1][0]
                if f2 is not None and first[f2] == i + 1 and f2 % PW == 0: extra = 4
                extra += 4 * len([x for x in s.pre.get(i + 1, []) if isinstance(x, (WaitVm, WaitLg))])
            b = s.capov.get(i, s.cap) + carry - extra
            left = fill(i, max(b, 4))
            for n, st in streams:
                if idx[n] < len(st) and st[idx[n]].deadline is not None and st[idx[n]].deadline <= i:
                    for _ in range(400):
                        if idx[n] < len(st) and st[idx[n]].deadline is not None and st[idx[n]].deadline <= i:
                            out.append(I("s_nop 0", "nop")); fill(i, 0)
                    assert not (idx[n] < len(st) and st[idx[n]].deadline is not None and st[idx[n]].deadline <= i), (n, i, st[idx[n]].ins.t)
            carry = max(min(left, 0), -8)
        for _ in range(200):
            fill(10**9, 10**9)
            if all(idx[n] == len(st) for n, st in streams): break
            out.append(I("s_nop 0", "nop"))
        for n, st in streams:
            assert idx[n] == len(st), (n, idx[n], len(st))
        return out
```

```python
from fw import *
import struct
def fbits(x): return "0x%08x" % struct.unpack("<I", struct.pack("<f", x))[0]
QSCALE = 1.4426950408889634 * 128 ** -0.5

def srd(k, s, lo, hi, off, nbytes):
    if off:
        k.e(f"s_add_u32 s{s}, s{lo}, {off}\ns_addc_u32 s{s+1}, s{hi}, 0")
    else:
        k.e(f"s_mov_b32 s{s}, s{lo}\ns_mov_b32 s{s+1}, s{hi}")
    k.e(f"s_mov_b32 s{s+2}, {nbytes}\ns_mov_b32 s{s+3}, 0x00020000")

def rnd(k, regs):
    for i in range(0, len(regs), 2):
        a, b = regs[i], regs[i + 1]
        k.e(f"v_cvt_pk_bf16_f32 v{b}, v{a}, v{b}")
    for i in range(0, len(regs), 2):
        a, b = regs[i], regs[i + 1]
        k.e(f"v_lshlrev_b32 v{a}, 16, v{b}\nv_and_b32 v{b}, 0xffff0000, v{b}")
def rnd1(k, r):
    k.e(f"v_cvt_pk_bf16_f32 v{r}, v{r}, v{r}\nv_and_b32 v{r}, 0xffff0000, v{r}")
def unpack(k, dst, src):
    for i, s in enumerate(src):
        k.e(f"v_lshlrev_b32 v{dst[2*i]}, 16, v{s}\nv_and_b32 v{dst[2*i+1]}, 0xffff0000, v{s}")

def gen_mod(name="mod_kernel"):
    k = Kern(name, vgpr=64, accum=64)
    done = k.lab("done")
    k.e(f"""
    s_cmp_ge_u32 s2, 216
    s_cbranch_scc1 {done}
    s_load_dwordx4 s[20:23], s[0:1], {KA['c']}
    s_load_dwordx2 s[24:25], s[0:1], {KA['ws']}
    v_lshrrev_b32 v1, 1, v0
    v_and_b32 v2, 1, v0
    s_movk_i32 s26, 6912
    v_mul_u32_u24 v3, s26, v1
    v_lshl_add_u32 v3, v2, 4, v3
    v_lshlrev_b32 v4, 1, v1
    s_lshl_b32 s27, s2, 5
    s_waitcnt lgkmcnt(0)
    """)
    srd(k, 4, 20, 21, 0, 1152); srd(k, 8, 22, 23, 0, 576 * 3456 * 2); srd(k, 12, 24, 25, WS_MOD, 3456 * 4)
    for i in range(5):
        k.e(f"buffer_load_ushort v{8+i}, v4, s[4:7], 0 offen offset:{256*i}")
    for i in range(5):
        k.e(f"buffer_load_dwordx4 v[{16+4*i}:{19+4*i}], v3, s[8:11], s27 offen")
        k.e(f"v_add_u32 v3, {128*6912}, v3")
    k.e("s_waitcnt vmcnt(5)")
    for i in range(5):
        k.e(f"""
        v_lshlrev_b32 v{8+i}, 16, v{8+i}
        v_mul_f32 v13, {fbits(-1.4426950408889634)}, v{8+i}
        v_exp_f32 v13, v13
        s_nop 0
        v_add_f32 v13, 1.0, v13
        v_rcp_f32 v13, v13
        s_nop 0
        v_mul_f32 v{8+i}, v{8+i}, v13
        """)
        rnd1(k, 8 + i)
    for j in range(8): k.e(f"v_mov_b32 v{40+j}, 0")
    for i in range(5):
        k.e(f"s_waitcnt vmcnt({4-i})")
        unpack(k, list(range(48, 56)), [16 + 4 * i + q for q in range(4)])
        for j in range(8): k.e(f"v_fmac_f32 v{40+j}, v{8+i}, v{48+j}")
    for sh in (2, 4, 8):
        k.e("s_nop 1")
        for j in range(8): k.e(f"v_add_f32_dpp v{40+j}, v{40+j}, v{40+j} row_shr:{sh} row_mask:0xf bank_mask:0xf bound_ctrl:0")
    k.e(f"""
    v_and_b32 v5, 15, v0
    v_cmp_le_u32 vcc, 14, v5
    v_lshrrev_b32 v6, 4, v0
    v_lshlrev_b32 v6, 6, v6
    v_lshl_add_u32 v6, v2, 5, v6
    s_and_saveexec_b64 s[30:31], vcc
    ds_write_b128 v6, v[40:43]
    ds_write_b128 v6, v[44:47] offset:16
    s_mov_b64 exec, s[30:31]
    s_waitcnt lgkmcnt(0)
    s_barrier
    v_cmp_gt_u32 vcc, 16, v0
    v_lshlrev_b32 v6, 2, v0
    s_and_saveexec_b64 s[30:31], vcc
    s_cbranch_execz {done}
    """)
    for i in range(16): k.e(f"ds_read_b32 v{16+i}, v6 offset:{64*i}")
    k.e("s_waitcnt lgkmcnt(0)")
    for i in range(1, 16): k.e(f"v_add_f32 v16, v16, v{16+i}")
    rnd1(k, 16)
    k.e(f"""
    v_add_f32 v17, 1.0, v16
    """)
    rnd1(k, 17)
    k.e(f"""
    s_mul_i32 s28, s2, 1821
    s_lshr_b32 s28, s28, 16
    s_cmp_eq_u32 s28, 1
    s_cselect_b32 s29, 1, 0
    s_cmp_eq_u32 s28, 4
    s_cselect_b32 s29, 1, s29
    s_cmp_eq_u32 s29, 1
    s_cselect_b64 vcc, -1, 0
    v_cndmask_b32 v16, v16, v17, vcc
    s_lshl_b32 s27, s2, 6
    buffer_store_dword v16, v6, s[12:15], s27 offen
    {done}:
    s_endpgm
    """)
    return k, (k, 216, 256, 1024)

def gen_row(name, mode, nsplit=16, qscale=True):
    k = Kern(name, vgpr=128, accum=128)
    done = k.lab("done")
    k.e(f"""
    s_cmp_ge_u32 s2, 256
    s_cbranch_scc1 {done}
    s_load_dwordx2 s[20:21], s[0:1], {KA['x']}
    s_load_dwordx2 s[22:23], s[0:1], {KA['out']}
    s_load_dwordx2 s[24:25], s[0:1], {KA['ws']}
    v_and_b32 v1, 7, v0
    v_lshrrev_b32 v2, 3, v0
    v_lshlrev_b32 v3, 8, v2
    v_lshl_add_u32 v3, v1, 4, v3
    v_lshrrev_b32 v4, 2, v2
    v_and_b32 v5, 3, v2
    v_lshlrev_b32 v6, 6, v4
    v_lshl_add_u32 v6, v5, 3, v6
    v_lshlrev_b32 v7, 1, v6
    s_movk_i32 s26, 1152
    v_mad_u32_u24 v6, v1, s26, v6
    s_lshr_b32 s27, s2, 1
    s_mul_i32 s27, s27, 18432
    s_and_b32 s28, s2, 1
    s_lshl_b32 s28, s28, 7
    s_add_u32 s27, s27, s28
    s_mul_i32 s28, s2, 9216
    s_waitcnt lgkmcnt(0)
    """)
    srd(k, 4, 24, 25, WS_MOD, 3456 * 4)
    srd(k, 8, 24, 25, WS_PART, ACT_BYTES * 16)
    if mode == "r2": srd(k, 12, 22, 23, 0, ACT_BYTES)
    else: srd(k, 12, 20, 21, 0, ACT_BYTES)
    srd(k, 16, 24, 25, WS_X1, ACT_BYTES)
    srd(k, 32, 24, 25, WS_H1 if mode == "ln1" else WS_H2, ACT_BYTES)
    X = list(range(16, 24)); T = list(range(24, 32)); G = list(range(32, 40)); Am = list(range(40, 48)); Sm = list(range(48, 56))
    nld = 0
    if mode != "ln1":
        k.e("s_mov_b32 s29, s27")
        for p in range(nsplit):
            k.e(f"buffer_load_dwordx4 v[{64+4*p}:{67+4*p}], v3, s[8:11], s29 offen")
            k.e(f"s_add_u32 s29, s29, {ACT_BYTES}")
    if mode == "r2":
        k.e(f"buffer_load_dwordx4 v[8:11], v3, s[16:19], s27 offen")
    else:
        k.e(f"buffer_load_dwordx2 v[8:9], v6, s[12:15], s28 offen\nbuffer_load_dwordx2 v[10:11], v6, s[12:15], s28 offen offset:32")
    def ldmod(dst, sec):
        k.e(f"s_movk_i32 s30, {sec*2304}")
        k.e(f"buffer_load_dwordx4 v[{dst[0]}:{dst[3]}], v7, s[4:7], s30 offen\nbuffer_load_dwordx4 v[{dst[4]}:{dst[7]}], v7, s[4:7], s30 offen offset:64")
    if mode == "ln1": ldmod(Am, 1); ldmod(Sm, 0); nafter = 4
    elif mode == "r1": ldmod(G, 2); ldmod(Am, 4); ldmod(Sm, 3); nafter = 8
    else: ldmod(G, 5); nafter = 3
    if mode != "ln1":
        A_ = list(range(56, 64))
        for p in range(nsplit):
            k.e(f"s_waitcnt vmcnt({nafter + nsplit - 1 - p})")
            src = [64 + 4 * p + q for q in range(4)]
            if p == 0: unpack(k, A_, src)
            else:
                unpack(k, T, src)
                for i in range(8): k.e(f"v_add_f32 v{A_[i]}, v{A_[i]}, v{T[i]}")
        k.e("s_waitcnt vmcnt(0)")
        unpack(k, X, [8, 9, 10, 11])
        rnd(k, A_)
        for i in range(8): k.e(f"v_mul_f32 v{A_[i]}, v{A_[i]}, v{G[i]}")
        rnd(k, A_)
        for i in range(8): k.e(f"v_add_f32 v{X[i]}, v{X[i]}, v{A_[i]}")
        for i in range(4): k.e(f"v_cvt_pk_bf16_f32 v{8+i}, v{X[2*i]}, v{X[2*i+1]}")
        if mode == "r2":
            k.e(f"buffer_store_dwordx2 v[8:9], v6, s[12:15], s28 offen\nbuffer_store_dwordx2 v[10:11], v6, s[12:15], s28 offen offset:32")
            k.e(f"{done}:\ns_endpgm")
            return k, (k, 256, 576, 0)
        k.e(f"buffer_store_dwordx4 v[8:11], v3, s[16:19], s27 offen")
        unpack(k, X, [8, 9, 10, 11])
    else:
        k.e("s_waitcnt vmcnt(4)")
        unpack(k, X, [8, 9, 10, 11])
    k.e(f"""
    v_lshrrev_b32 v12, 4, v0
    v_mul_u32_u24 v13, 144, v1
    v_lshl_add_u32 v12, v12, 2, v13
    v_and_b32 v14, 8, v0
    v_cmp_eq_u32 s[36:37], 0, v14
    """)
    def rowsum(src, dst, region):
        k.e(f"""
        v_add_f32 v{dst}, v{src[0]}, v{src[1]}
        v_add_f32 v14, v{src[2]}, v{src[3]}
        v_add_f32 v15, v{src[4]}, v{src[5]}
        v_add_f32 v{dst}, v{dst}, v14
        v_add_f32 v14, v{src[6]}, v{src[7]}
        v_add_f32 v15, v15, v14
        v_add_f32 v{dst}, v{dst}, v15
        s_nop 1
        v_add_f32_dpp v{dst}, v{dst}, v{dst} row_ror:8 row_mask:0xf bank_mask:0xf
        s_and_saveexec_b64 s[38:39], s[36:37]
        ds_write_b32 v12, v{dst} offset:{region}
        s_mov_b64 exec, s[38:39]
        s_waitcnt lgkmcnt(0)
        s_barrier
        """)
        for i in range(9): k.e(f"ds_read_b128 v[{64+4*i}:{67+4*i}], v13 offset:{region+16*i}")
        k.e("s_waitcnt lgkmcnt(0)")
        for st in (18, 9):
            for i in range(st): k.e(f"v_add_f32 v{64+i}, v{64+i}, v{64+st+i}")
        for i in range(1, 9): k.e(f"v_add_f32 v64, v64, v{64+i}")
        k.e(f"v_mul_f32 v{dst}, {fbits(1/576)}, v64")
    rowsum(X, 56, 0)
    for i in range(8): k.e(f"v_sub_f32 v{T[i]}, v{X[i]}, v56")
    for i in range(8): k.e(f"v_mul_f32 v{T[i]}, v{T[i]}, v{T[i]}")
    rowsum(T, 57, 1152)
    rnd(k, [56, 57])
    k.e(f"v_add_f32 v57, {fbits(1e-5)}, v57")
    rnd1(k, 57)
    k.e("v_sqrt_f32 v57, v57\ns_nop 0")
    rnd1(k, 57)
    k.e("v_rcp_f32 v57, v57")
    for i in range(8): k.e(f"v_sub_f32 v{X[i]}, v{X[i]}, v56")
    rnd(k, X)
    for i in range(8): k.e(f"v_mul_f32 v{X[i]}, v{X[i]}, v57")
    rnd(k, X)
    k.e("s_waitcnt vmcnt(0)")
    for i in range(8): k.e(f"v_mul_f32 v{X[i]}, v{X[i]}, v{Am[i]}")
    rnd(k, X)
    for i in range(8): k.e(f"v_add_f32 v{X[i]}, v{X[i]}, v{Sm[i]}")
    if mode == "ln1" and qscale:
        for i in range(8): k.e(f"v_mul_f32 v{X[i]}, {fbits(QSCALE)}, v{X[i]}")
    for i in range(4): k.e(f"v_cvt_pk_bf16_f32 v{8+i}, v{X[2*i]}, v{X[2*i+1]}")
    k.e(f"buffer_store_dwordx4 v[8:11], v3, s[32:35], s27 offen")
    k.e(f"{done}:\ns_endpgm")
    return k, (k, 256, 576, 2304)
```

```python
import sys
from fw import *
from small import *
from ka import gen_ka
from kb import gen_kb
NAME = "adaLN_cond__sliding_block_cached__glu_gated_reglu__prompt"
def header():
    L = open(f"cdna_kernels/{NAME}.s.ref").read().split("\n")
    return "\n".join(l for l in L[:15] if l.startswith(";") and "@launch" not in l)
def full(path, stamps=False):
    ks = [gen_mod(), gen_row("ln1_kernel", "ln1"), gen_ka(stamps=stamps, th=60.0), gen_row("r1_kernel", "r1"), gen_kb(stamps=stamps), gen_row("r2_kernel", "r2")]
    txt = build([l for _, l in ks], [k for k, _ in ks], header())
    open(path, "w").write(txt)
    print(path, len(txt))
if __name__ == "__main__":
    full(f"cdna_kernels/{NAME}.s")
```

```python
KA = dict(x=0, kc=8, vc=16, wq=24, wo=32, bx=40, wg=48, wu=56, wd=64, c=72, wmod=80, out=88, dbg=96, ws=104)

def R(kind, lo, n=1):
    return {(kind, lo + i) for i in range(n)}
def rt(kind, lo, n=1):
    return f"{kind}{lo}" if n == 1 else f"{kind}[{lo}:{lo+n-1}]"

class Reg:
    __slots__ = ("k", "lo", "n")
    def __init__(s, k, lo, n=1): s.k = k; s.lo = lo; s.n = n
    def __str__(s): return rt(s.k, s.lo, s.n)
    def set(s): return R(s.k, s.lo, s.n)
    def __getitem__(s, i): return Reg(s.k, s.lo + i, 1)
    def sub(s, i, n): return Reg(s.k, s.lo + i, n)
def V(lo, n=1): return Reg("v", lo, n)
def A(lo, n=1): return Reg("a", lo, n)

class I:
    __slots__ = ("t", "kind", "rd", "wr", "c", "tag", "sz")
    def __init__(s, t, kind="other", rd=(), wr=(), c=(), tag=None, sz=None):
        s.t = t; s.kind = kind
        s.rd = set().union(*[r.set() for r in rd]) if rd else set()
        s.wr = set().union(*[r.set() for r in wr]) if wr else set()
        s.c = set().union(*[r.set() for r in c]) if c else set()
        s.tag = tag; s.sz = sz

def mfma(d, a, b, c=None):
    if c is None: c = d
    if isinstance(c, Reg):
        return I(f"MF {d}, {a}, {b}, {c}", "mfma", rd=(a, b, c), wr=(d,), c=(c,))
    return I(f"MF {d}, {a}, {b}, {c}", "mfma", rd=(a, b), wr=(d,))
def valu(op, d, *srcs, trans=False, extra=""):
    rd = [s for s in srcs if isinstance(s, Reg)]
    return I(f"{op} {d}, " + ", ".join(str(s) for s in srcs) + extra, "trans" if trans else "valu", rd=rd, wr=(d,))
def valu_rmw(op, d, *srcs):
    rd = [s for s in srcs if isinstance(s, Reg)] + [d]
    return I(f"{op} {d}, " + ", ".join(str(s) for s in srcs), "valu", rd=rd, wr=(d,))
def dsr_tr(d, addr, off):
    return I(f"TR {d}, {addr}, {off}", "dsr", rd=(addr,), wr=(d,))
def dsr64(d, addr, off):
    return I(f"DR {d}, {addr}, {off}", "dsr", rd=(addr,), wr=(d,))
def salu(t): return I(t, "salu")
def raw(t, kind="other"): return I(t, kind)
def dma(voff, srd, soff, off, tag):
    o = f" offset:{off}" if off else ""
    return I(f"buffer_load_dwordx4 {voff}, s[{srd}:{srd+3}], {soff} offen{o} lds", "vmem", rd=(voff,), tag=tag)
def gload(d, voff, srd, soff, off, tag, n="x4", flags=""):
    o = f" offset:{off}" if off else ""
    return I(f"buffer_load_dword{n} {d}, {voff}, s[{srd}:{srd+3}], {soff} offen{o}{flags}", "vmem", rd=(voff,), wr=(d,), tag=tag)
def gstore(d, voff, srd, soff, off, tag="st", n="x4", flags=""):
    o = f" offset:{off}" if off else ""
    return I(f"buffer_store_dword{n} {d}, {voff}, s[{srd}:{srd+3}], {soff} offen{o}{flags}", "vst", rd=(voff, d), tag=tag)
class WaitVm:
    def __init__(s, tags): s.tags = set(tags)
class WaitLg:
    def __init__(s, need): s.need = set().union(*[r.set() for r in need])

MACROS = """
.macro MF d, a, b, c
v_mfma_f32_16x16x32_bf16 \\d, \\a, \\b, \\c
.endm
.macro TR d, a, o
ds_read_b64_tr_b16 \\d, \\a offset:\\o
.endm
.macro DR d, a, o
ds_read_b64 \\d, \\a offset:\\o
.endm
"""

def resolve(prog):
    out = []
    vq = []
    lq = []
    remaining = {}
    for x in prog:
        if isinstance(x, I) and x.kind in ("vmem", "vst"): remaining[x.tag] = remaining.get(x.tag, 0) + 1
    for x in prog:
        if isinstance(x, I) and x.kind in ("vmem", "vst"): remaining[x.tag] -= 1
        if isinstance(x, WaitVm):
            for t in x.tags: assert remaining.get(t, 0) == 0, ("wait before issue", t)
            idx = max([i for i, t in enumerate(vq) if t in x.tags], default=-1)
            if idx >= 0:
                n = len(vq) - 1 - idx
                assert n <= 63
                out.append(I(f"s_waitcnt vmcnt({n})", "wait"))
                vq = vq[idx + 1:]
        elif isinstance(x, WaitLg):
            idx = max([i for i, w in enumerate(lq) if w & x.need], default=-1)
            if idx >= 0:
                n = len(lq) - 1 - idx
                assert n <= 15, n
                out.append(I(f"s_waitcnt lgkmcnt({n})", "wait"))
                lq = lq[idx + 1:]
        else:
            if x.kind in ("vmem", "vst"):
                for _ in range(x.sz or 1): vq.append(x.tag)
                if len(vq) > 63: raise Exception("vmcnt overflow")
            if x.kind in ("dsr", "dsw"):
                lq.append(x.wr)
            if x.kind == "waitall":
                vq = []; lq = []
            if x.kind == "waitlg0": lq = []
            if x.kind == "waitvm0": vq = []
            out.append(x)
    return out

def check_lds_raw(prog):
    import re
    lq = []
    for x in prog:
        if x.kind == "wait" and "lgkmcnt" in x.t:
            n = int(re.search(r"lgkmcnt\((\d+)\)", x.t).group(1))
            lq = lq[len(lq) - n:] if n else []
        elif x.kind in ("waitall", "waitlg0"):
            lq = []
        else:
            pend = set().union(*lq) if lq else set()
            if (x.rd | x.wr) & pend and x.kind != "dsr":
                raise Exception("LDS RAW not covered: " + x.t)
            if x.kind == "dsr":
                if x.wr & pend: raise Exception("LDS WAW: " + x.t)
                lq.append(x.wr)
            if x.kind == "dsw": lq.append(set())

def nop_states(x):
    if x.kind == "marker": return 0
    if x.t.startswith("s_nop"):
        return int(x.t.split()[1]) + 1
    return 1

def pad_hazards(prog, mf_pass=4):
    D_RAW = {4: 8, 8: 12}[mf_pass]; C_WAR = {4: 3, 8: 7}[mf_pass]; C_PART = {4: 6, 8: 10}[mf_pass]
    out = []
    pos = 0
    last_mf_w = {}; last_mf_c = {}; last_valu_w = {}; last_trans_w = {}; last_st_rd = {}; mf_d_of = {}
    nins = 0
    for x in prog:
        need = 0
        def req(table, regs, dist):
            nonlocal need
            for r in regs:
                if r in table:
                    need = max(need, dist - (pos - table[r] - 1))
        if x.kind == "mfma":
            req(last_valu_w, x.rd, 2)
            ab = x.rd - x.c
            req(last_mf_w, ab, D_RAW)
            for r in x.c:
                if r in last_mf_w and mf_d_of[r] != frozenset(x.c):
                    need = max(need, C_PART - (pos - last_mf_w[r] - 1))
        elif x.kind in ("valu", "trans"):
            req(last_mf_w, x.rd | x.wr, D_RAW)
            req(last_mf_c, x.wr, C_WAR)
            if x.kind == "valu": req(last_trans_w, x.rd, 1)
            req(last_st_rd, x.wr, 2)
            if "permlane" in x.t or "dpp" in x.t: req(last_valu_w, x.rd | x.wr, 2)
            if "readfirstlane" in x.t or "readlane" in x.t: req(last_valu_w, x.rd, 1)
        elif x.kind in ("vmem", "vst", "dsr", "dsw"):
            req(last_mf_w, x.rd | x.wr, D_RAW)
            req(last_st_rd, x.wr, 1)
        if x.kind == "vmem" and x.t.endswith(" lds") and out and out[-1].kind == "salu" and " m0," in out[-1].t:
            need = max(need, 1)
        while need > 0:
            n = min(need, 16)
            out.append(I(f"s_nop {n-1}", "nop")); pos += n; need -= n; nins += 1
        out.append(x)
        if x.kind == "mfma":
            for r in x.wr: last_mf_w[r] = pos; mf_d_of[r] = frozenset(x.wr)
            for r in x.c: last_mf_c[r] = pos
        elif x.kind in ("valu", "trans"):
            for r in x.wr:
                last_valu_w[r] = pos
                if x.kind == "trans": last_trans_w[r] = pos
                else: last_trans_w.pop(r, None)
        elif x.kind == "vst":
            for r in x.rd: last_st_rd[r] = pos
        pos += nop_states(x)
    return out, nins

import re as _re
def isize(x):
    n = 0
    for l in x.t.split("\n"):
        l = l.strip()
        if not l or l.endswith(":"): continue
        op = l.split()[0]
        if op in ("MF", "TR", "DR") or op.startswith(("buffer_", "ds_", "s_mem", "s_load", "v_accvgpr", "v_cvt_pk", "v_max3", "v_pk_", "v_mad", "v_lshl_add", "v_bfe", "v_readfirst")) and not op.startswith("v_readfirst"): n += 8
        else:
            n += 4
            if _re.search(r"0x[0-9a-f]{3,}|\b\d{3,}\b", l.split(None, 1)[1] if " " in l else "") and not op.startswith(("s_waitcnt", "s_cbranch", "s_branch")): n += 4
    return n
def insert_warm(k, p, S, nseg=4):
    b = next(i for i, x in enumerate(p) if x.tag == "WARM_BEGIN"); e = next(i for i, x in enumerate(p) if x.tag == "WARM_END")
    pos = []; d = S
    for i in range(b + 1, e):
        x = p[i]
        if d >= S - 48 and p[i - 1].kind == "mfma":
            j = i; c = 0
            while j < e and p[j].kind != "mfma": c += 8 if p[j].kind == "trans" else 4; j += 1
            if c <= 4 or d >= S + 32: pos.append(i); d = 0
        elif d >= S + 64: pos.append(i); d = 0
        d += isize(x)
    n = len(pos)
    nm = lambda i: f"{k.name}_w{i}"
    ret = f"{k.name}_wret"
    starts = [w * n // nseg for w in range(nseg)]
    out = []; pi = 0
    for i, x in enumerate(p):
        if pi < n and i == pos[pi]:
            tgt = ret if (pi + 1 in starts or pi + 1 == n) else nm(pi + 1)
            out.append(I(f"{nm(pi)}:\ns_cbranch_execz {tgt}", "salu")); pi += 1
        if x.tag == "WARM_HERE":
            t = "s_mov_b64 exec, 0\n"
            for w in range(1, nseg): t += f"s_cmp_eq_u32 s{k.sWave}, {w}\ns_cbranch_scc1 {nm(starts[w])}\n"
            t += f"s_branch {nm(0)}\n{ret}:\ns_mov_b64 exec, -1\ns_nop 4"
            out.append(I(t, "salu")); continue
        if x.tag in ("WARM_BEGIN", "WARM_END"): continue
        out.append(x)
    k.nwarm = n
    return out
def marker(tag): return I("", "marker", tag=tag)

class Kern:
    def __init__(s, name, vgpr=512, accum=256, sgpr=102):
        s.name = name; s.p = []; s.vgpr = vgpr; s.accum = accum; s.sgpr = sgpr; s._l = 0; s.warm = 0; s.sWave = None
    def e(s, txt, kind="other"):
        for l in txt.strip("\n").split("\n"):
            l = l.strip()
            if l: s.p.append(I(l, kind))
    def add(s, x):
        if isinstance(x, list): s.p.extend(x)
        else: s.p.append(x)
    def lab(s, b="L"):
        s._l += 1; return f"{s.name}_{b}{s._l}"
    def finish(s):
        p = resolve(s.p)
        check_lds_raw(p)
        p, n = pad_hazards(p)
        if s.warm: p = insert_warm(s, p, s.warm)
        p = [x for x in p if x.kind != 'marker']
        s.final = p; s.npad = n
    def text(s):
        s.finish()
        body = "\n".join(x.t for x in s.final if x.t)
        return f".globl {s.name}\n.p2align 8\n.type {s.name},@function\n{s.name}:\n{body}\n"
    def desc(s):
        return (f".amdhsa_kernel {s.name}\n  .amdhsa_next_free_vgpr {s.vgpr}\n  .amdhsa_next_free_sgpr {s.sgpr}\n"
                f"  .amdhsa_accum_offset {s.accum}\n  .amdhsa_group_segment_fixed_size 0\n  .amdhsa_kernarg_size 112\n"
                f"  .amdhsa_user_sgpr_count 2\n  .amdhsa_user_sgpr_kernarg_segment_ptr 1\n  .amdhsa_system_sgpr_workgroup_id_x 1\n"
                f".end_amdhsa_kernel\n")

def build(launches, kernels, header=""):
    out = [header.rstrip("\n")] if header else []
    for (k, g, b, lds) in launches:
        out.append(f"; @launch kernel={k.name} grid=({g},1,1) block=({b},1,1) lds={lds}")
    out.append('.amdgcn_target "amdgcn-amd-amdhsa--gfx950"')
    out.append(MACROS)
    out.append(".text")
    for k in kernels: out.append(k.text())
    out.append("code_end:\ns_endpgm")
    out.append('.section .rodata,"a"')
    for k in kernels: out.append(".p2align 6\n" + k.desc())
    return "\n".join(out)

WS_MOD = 0
WS_TAB = 0x4000
WS_H1 = 0x10000
WS_X1 = 0x300000
WS_H2 = 0x600000
WS_PART = 0x1000000
ACT_BYTES = 2048 * 576 * 2
WS_FLAG = 0x900000
WS_STAMP = 0x8000000

STAMP_OP = ["s_memrealtime"]
def stamp_i(i): return I(f"{STAMP_OP[0]} s[{84+2*i}:{85+2*i}]")
def stamp_flush(k, kidx, n, wave_v="v0"):
    k.e(f"""
    s_waitcnt vmcnt(0) lgkmcnt(0)
    {STAMP_OP[0]} s[{84+2*(n-1)}:{85+2*(n-1)}]
    s_load_dwordx2 s[100:101], s[0:1], {KA['ws']}
    s_mov_b64 exec, -1
    s_waitcnt lgkmcnt(0)
    """)
    for i in range(8): k.e(f"v_mov_b32 v{10+i}, s{84+2*min(i, n-1)}")
    k.e(f"""
    s_add_u32 s96, s100, {WS_STAMP + kidx * 0x20000}
    s_addc_u32 s97, s101, 0
    s_mov_b32 s98, 0x20000
    s_mov_b32 s99, 0x00020000
    s_lshl_b32 s79, s2, 9
    s_lshl_b32 s78, s78, 5
    s_add_u32 s79, s79, s78
    v_mov_b32 v8, 0
    """)
    k.e("""
    buffer_store_dwordx4 v[10:13], v8, s[96:99], s79 offen
    buffer_store_dwordx4 v[14:17], v8, s[96:99], s79 offen offset:16
    """)
def stamp_begin(k):
    k.e(f"""
    {STAMP_OP[0]} s[84:85]
    v_lshrrev_b32 v1, 6, v0
    s_nop 1
    v_readfirstlane_b32 s78, v1
    """)
```

```python
from fw import *
from pf import *
from small import fbits, srd, rnd, rnd1, unpack, QSCALE

def gen_k0(name="k0_kernel", stamps=0, prefetch=True, pf_wo_too=False, pf_kv=False, wq_rows=16):
    k = Kern(name, vgpr=128, accum=128)
    done = k.lab("done"); nomod1 = k.lab("nm1"); nomod2 = k.lab("nm2"); nomod3 = k.lab("nm3"); poll = k.lab("poll"); nopoll = k.lab("np"); nopf = k.lab("nopf")
    k.e(f"s_cmp_ge_u32 s2, 256\ns_cbranch_scc1 {done}")
    if stamps: stamp_begin(k)
    k.e(f"""
    s_load_dwordx2 s[20:21], s[0:1], {KA['x']}
    s_load_dwordx4 s[64:67], s[0:1], {KA['c']}
    s_load_dwordx4 s[68:71], s[0:1], {KA['dbg']}
    s_load_dwordx8 s[40:47], s[0:1], {KA['kc']}
    v_lshrrev_b32 v2, 6, v0
    v_and_b32 v1, 7, v0
    v_readfirstlane_b32 s72, v2
    v_lshrrev_b32 v2, 3, v0
    v_lshlrev_b32 v3, 8, v2
    v_lshl_add_u32 v3, v1, 4, v3
    v_lshrrev_b32 v4, 2, v2
    v_and_b32 v5, 3, v2
    v_lshlrev_b32 v6, 6, v4
    v_lshl_add_u32 v6, v5, 3, v6
    v_lshlrev_b32 v7, 1, v6
    s_movk_i32 s26, 1152
    v_mad_u32_u24 v6, v1, s26, v6
    s_lshr_b32 s27, s2, 1
    s_mul_i32 s27, s27, 18432
    s_and_b32 s28, s2, 1
    s_lshl_b32 s28, s28, 7
    s_add_u32 s27, s27, s28
    s_mul_i32 s28, s2, 9216
    v_lshrrev_b32 v100, 1, v0
    v_and_b32 v101, 1, v0
    s_movk_i32 s26, 6912
    v_mul_u32_u24 v102, s26, v100
    v_lshl_add_u32 v102, v101, 4, v102
    v_lshlrev_b32 v103, 1, v100
    s_lshl_b32 s29, s2, 5
    s_cmp_lt_u32 s72, 4
    s_cselect_b32 s73, 1, 0
    s_cmp_lt_u32 s2, 216
    s_cselect_b32 s73, s73, 0
    s_waitcnt lgkmcnt(0)
    """)
    srd(k, 12, 20, 21, 0, ACT_BYTES); srd(k, 4, 70, 71, WS_MOD, 0x8000); srd(k, 32, 70, 71, WS_H1, ACT_BYTES)
    srd(k, 8, 64, 65, 0, 1152); srd(k, 16, 66, 67, 0, 576 * 3456 * 2); srd(k, 36, 68, 69, 0, 256); srd(k, 20, 70, 71, WS_FLAG, 0x20000)
    k.e(f"s_cmp_eq_u32 s73, 0\ns_cbranch_scc1 {nomod1}")
    for i in range(5): k.e(f"buffer_load_ushort v{104+i}, v103, s[8:11], 0 offen offset:{256*i}")
    for i in range(5):
        k.e(f"buffer_load_dwordx4 v[{64+4*i}:{67+4*i}], v102, s[16:19], s29 offen\nv_add_u32 v102, {128*6912}, v102")
    k.e(f"{nomod1}:")
    k.e("buffer_load_dwordx2 v[8:9], v6, s[12:15], s28 offen\nbuffer_load_dwordx2 v[10:11], v6, s[12:15], s28 offen offset:32")
    k.e(f"s_cmp_lt_u32 s72, 4\ns_cbranch_scc1 {nopf}\ns_cmp_eq_u32 s72, 8\ns_cbranch_scc1 {nopf}")
    k.e("v_subrev_u32 v110, 256, v0\nv_mov_b32 v111, 0\nv_lshlrev_b32 v112, 2, v110\ns_lshl_b32 s30, s2, 10\nbuffer_store_dword v111, v112, s[20:23], s30 offen")
    npf = 1
    if prefetch:
        k.e("v_and_b32 v113, 63, v0\nv_lshlrev_b32 v114, 4, v113\ns_sub_u32 s74, s72, 4")
        D = V(116, 4)
        L = srd_txt(48, 40, 41, 16 * 2048 * 256) + srd_txt(52, 42, 43, 16 * 2048 * 256) + srd_txt(56, 44, 45, 576 * 4096 * 2) + ids(60, 61)
        L += pf_rows(113, 112, 115, D, [56], 62, 63, 60, 512, 61, wq_rows, 8192, 32, 74, 4)
        L += pf_code(k, 114, D, 56, 62, "ka_kernel", "r1_kernel", 3)
        if pf_kv:
          for srd_ in (48, 52): L += pf_contig(114, D, srd_, 62, 63, 60, 2048 * 256, 61, 8192, 74, 4, base=1536 * 256)
        if pf_wo_too: L += srd_txt(56, 46, 47, 576 * 4096 * 2) + pf_contig(114, D, 56, 62, 63, 60, 256 * 1152, 61, 16 * 1152, 74, 4)
        k.add(L); npf += sum(1 for x in L if x.kind == "vmem")
    k.e(f"{nopf}:")
    X = list(range(16, 24)); T = list(range(24, 32)); Am = list(range(40, 48)); Sm = list(range(48, 56))
    k.e(f"s_cmp_eq_u32 s73, 0\ns_cbranch_scc1 {nomod2}\ns_waitcnt vmcnt(7)")
    for i in range(5):
        k.e(f"""
        v_lshlrev_b32 v{104+i}, 16, v{104+i}
        v_mul_f32 v109, {fbits(-1.4426950408889634)}, v{104+i}
        v_exp_f32 v109, v109
        s_nop 0
        v_add_f32 v109, 1.0, v109
        v_rcp_f32 v109, v109
        s_nop 0
        v_mul_f32 v{104+i}, v{104+i}, v109
        """)
        rnd1(k, 104 + i)
    for j in range(8): k.e(f"v_mov_b32 v{84+j}, 0")
    for i in range(5):
        k.e(f"s_waitcnt vmcnt({6-i})")
        unpack(k, list(range(92, 100)), [64 + 4 * i + q for q in range(4)])
        for j in range(8): k.e(f"v_fmac_f32 v{84+j}, v{104+i}, v{92+j}")
    for sh in (2, 4, 8):
        k.e("s_nop 1")
        for j in range(8): k.e(f"v_add_f32_dpp v{84+j}, v{84+j}, v{84+j} row_shr:{sh} row_mask:0xf bank_mask:0xf bound_ctrl:0")
    k.e(f"""
    v_and_b32 v92, 15, v0
    v_cmp_le_u32 vcc, 14, v92
    v_lshrrev_b32 v93, 4, v0
    v_lshlrev_b32 v93, 6, v93
    v_lshl_add_u32 v93, v101, 5, v93
    s_and_saveexec_b64 s[30:31], vcc
    ds_write_b128 v93, v[84:87] offset:2304
    ds_write_b128 v93, v[88:91] offset:2320
    s_mov_b64 exec, s[30:31]
    {nomod2}:
    """)
    lw = k.lab("xw"); lw2 = k.lab("xw")
    k.e(f"""
    s_sub_u32 s74, s72, 4
    s_cmp_lt_u32 s74, 4
    s_cbranch_scc1 {lw}
    s_waitcnt vmcnt(0)
    s_branch {lw2}
    {lw}:
    s_waitcnt vmcnt({npf})
    {lw2}:
    """)
    unpack(k, X, [8, 9, 10, 11])
    k.e(f"""
    v_lshrrev_b32 v12, 4, v0
    v_mul_u32_u24 v13, 144, v1
    v_lshl_add_u32 v12, v12, 2, v13
    v_and_b32 v14, 8, v0
    v_cmp_eq_u32 s[76:77], 0, v14
    """)
    def rowsum(src, dst, region, mid=None):
        k.e(f"""
        v_add_f32 v{dst}, v{src[0]}, v{src[1]}
        v_add_f32 v14, v{src[2]}, v{src[3]}
        v_add_f32 v15, v{src[4]}, v{src[5]}
        v_add_f32 v{dst}, v{dst}, v14
        v_add_f32 v14, v{src[6]}, v{src[7]}
        v_add_f32 v15, v15, v14
        v_add_f32 v{dst}, v{dst}, v15
        s_nop 1
        v_add_f32_dpp v{dst}, v{dst}, v{dst} row_ror:8 row_mask:0xf bank_mask:0xf
        s_and_saveexec_b64 s[30:31], s[76:77]
        ds_write_b32 v12, v{dst} offset:{region}
        s_mov_b64 exec, s[30:31]
        s_waitcnt lgkmcnt(0)
        s_barrier
        """)
        if mid: mid()
        for i in range(9): k.e(f"ds_read_b128 v[{64+4*i}:{67+4*i}], v13 offset:{region+16*i}")
        k.e("s_waitcnt lgkmcnt(0)")
        for st in (18, 9):
            for i in range(st): k.e(f"v_add_f32 v{64+i}, v{64+i}, v{64+st+i}")
        for i in range(1, 9): k.e(f"v_add_f32 v64, v64, v{64+i}")
        k.e(f"v_mul_f32 v{dst}, {fbits(1/576)}, v64")
    def modfinal():
        k.e(f"""
        s_cmp_lg_u32 s72, 0
        s_cbranch_scc1 {nomod3}
        s_cmp_eq_u32 s73, 0
        s_cbranch_scc1 {nomod3}
        v_and_b32 v100, 15, v0
        v_lshlrev_b32 v100, 2, v100
        """)
        for i in range(16): k.e(f"ds_read_b32 v{64+i}, v100 offset:{2304+64*i}")
        k.e("s_waitcnt lgkmcnt(0)")
        for st in (8, 4, 2, 1):
            for i in range(st): k.e(f"v_add_f32 v{64+i}, v{64+i}, v{64+st+i}")
        rnd1(k, 64)
        k.e("v_add_f32 v65, 1.0, v64")
        rnd1(k, 65)
        k.e(f"""
        s_mul_i32 s30, s2, 1821
        s_lshr_b32 s30, s30, 16
        s_cmp_eq_u32 s30, 1
        s_cselect_b32 s31, 1, 0
        s_cmp_eq_u32 s30, 4
        s_cselect_b32 s31, 1, s31
        s_cmp_eq_u32 s31, 1
        s_cselect_b64 vcc, -1, 0
        v_cndmask_b32 v64, v64, v65, vcc
        s_lshl_b32 s30, s2, 6
        buffer_store_dword v64, v100, s[4:7], s30 offen
        s_cmp_ge_u32 s2, 72
        s_cbranch_scc1 {nomod3}
        v_mul_f32 v64, {fbits(QSCALE)}, v64
        v_and_b32 v65, 0x30, v100
        v_and_b32 v66, 0xc, v100
        v_lshl_add_u32 v65, v65, 2, v66
        s_cmp_lt_u32 s2, 36
        s_cselect_b32 s31, 32, 0
        s_cselect_b32 s30, 0, 36
        s_sub_u32 s30, s2, s30
        s_and_b32 s75, s30, 1
        s_lshl_b32 s75, s75, 4
        s_add_u32 s31, s31, s75
        s_lshr_b32 s30, s30, 1
        s_lshl_b32 s30, s30, 8
        s_add_u32 s30, s30, s31
        s_add_u32 s30, s30, {WS_TAB}
        buffer_store_dword v64, v65, s[4:7], s30 offen
        {nomod3}:
        """)
    rowsum(X, 56, 0, modfinal)
    for i in range(8): k.e(f"v_sub_f32 v{T[i]}, v{X[i]}, v56")
    for i in range(8): k.e(f"v_mul_f32 v{T[i]}, v{T[i]}, v{T[i]}")
    rowsum(T, 57, 1152)
    rnd(k, [56, 57])
    k.e(f"v_add_f32 v57, {fbits(1e-5)}, v57")
    rnd1(k, 57)
    k.e("v_sqrt_f32 v57, v57\ns_nop 0")
    rnd1(k, 57)
    k.e("v_rcp_f32 v57, v57")
    for i in range(8): k.e(f"v_sub_f32 v{X[i]}, v{X[i]}, v56")
    rnd(k, X)
    for i in range(8): k.e(f"v_mul_f32 v{X[i]}, v{X[i]}, v57")
    rnd(k, X)
    for i in range(4): k.e(f"v_cvt_pkrtz_f16_f32 v{8+i}, v{X[2*i]}, v{X[2*i+1]}")
    k.e(f"buffer_store_dwordx4 v[8:11], v3, s[32:35], s27 offen")
    if stamps: stamp_flush(k, stamps, 2)
    k.e(f"{done}:\ns_endpgm")
    return k, (k, 256, 576, 2304 + 1024)
```

```python
from fw import *
from sched import *
from kb import lane_consts, tr_addrs_F
from pairx import PairX
from pf import *

TH = 24.0

def gen_ka(name="ka_kernel", stamps=False, R=6, cap=8, acap=8, qcap=10, th=TH, dmaspace=8, stf="", prefetch=True, pfstep=300, coderef=True, pf_own=True, px_opts=dict(allsc1=True), warm=0):
    k = Kern(name)
    SLOT = 16384; NS = 8
    sQ, sK, sV, sO, sH, sP = 8, 12, 16, 20, 24, 28
    sQoff, sKoff, sVoff, sOoff, sHoff, sPoff, sM0, sWave = 32, 33, 34, 35, 36, 37, 38, 39
    vDq, vDk, vDo = 1, 5, 9
    vT = (13, 17); vK = (21, 25); vL0, vL1 = 29, 30
    CI = lambda hm: V(32 + 4 * hm, 4)
    ONES = V(48, 4)
    MX = lambda hm: V(52 + hm)
    t = [56, 57, 58, 59, 252, 253, 254, 255]
    Q = lambda h, mb, s: V(60 + ((h * 2 + mb) * 4 + s) * 4, 4)
    S = lambda j, kb, hm: V(124 + (j % 2) * 64 + (kb * 4 + hm) * 4, 4)
    QA = lambda nb, mb: V(124 + (nb * 2 + mb) * 4, 4)
    O = lambda hm, db: A((hm * 8 + db) * 4, 4)
    LS = lambda hm: A(128 + hm * 4, 4)
    XR = 6
    Bf = lambda s, mb: V(60 + ((s % XR) * 2 + mb) * 4, 4)
    TB = lambda s: V((32, 108)[s % 2], 16)
    vTab = 48
    ring = [A(144 + 4 * i, 4) for i in range(R)]
    done = k.lab("done")
    k.e(f"""
    s_cmp_ge_u32 s2, 256
    s_cbranch_scc1 {done}
    """)
    if stamps: stamp_begin(k)
    k.e(f"""
    s_load_dwordx8 s[44:51], s[0:1], {KA['kc']}
    s_load_dwordx2 s[52:53], s[0:1], {KA['ws']}
    s_load_dwordx4 s[4:7], s[0:1], {KA['wg']}
    s_load_dwordx2 s[54:55], s[0:1], {KA['wd']}
    v_lshrrev_b32 v{t[0]}, 6, v0
    s_nop 0
    v_readfirstlane_b32 s{sWave}, v{t[0]}
    """)
    k.add(ids(40, 41))
    vl, vg, vr, vc = t[0], t[1], t[2], t[3]
    a, b, c_, d = t[4], t[5], t[6], t[7]
    lane_consts(k, vl, vg, vr, vc)
    k.e(f"""
    s_lshl_b32 s{sM0}, s{sWave}, 12
    s_lshl_b32 s{sQoff}, s40, 9
    s_lshl_b32 s42, s{sWave}, 7
    s_add_u32 s{sQoff}, s{sQoff}, s42
    s_lshl_b32 s42, s40, 11
    s_add_u32 s42, s42, 1536
    s_and_b32 s43, s{sWave}, 1
    s_lshl_b32 s43, s43, 5
    s_add_u32 s42, s42, s43
    s_lshl_b32 s42, s42, 8
    s_lshr_b32 s43, s{sWave}, 1
    s_lshl_b32 s43, s43, 7
    s_add_u32 s{sKoff}, s42, s43
    s_mov_b32 s{sVoff}, s{sKoff}
    s_lshl_b32 s42, s40, 8
    s_lshl_b32 s43, s{sWave}, 5
    s_add_u32 s42, s42, s43
    s_mul_i32 s{sOoff}, s42, 1152
    s_lshl_b32 s43, s41, 3
    s_lshl_b32 s42, s{sWave}, 1
    s_add_u32 s43, s43, s42
    s_mul_i32 s{sHoff}, s43, 18432
    s_lshr_b32 s42, s40, 1
    s_mul_i32 s42, s42, {ACT_BYTES}
    s_add_u32 s{sPoff}, s{sHoff}, s42
    v_lshlrev_b32 v{vL0}, 4, v{vl}
    v_add_u32 v{vL1}, 18432, v{vL0}
    v_lshrrev_b32 v{a}, 3, v{vl}
    v_and_b32 v{b}, 7, v{vl}
    v_lshlrev_b32 v{c_}, 1, v{vg}
    v_xor_b32 v{b}, v{b}, v{c_}
    v_xor_b32 v{c_}, 1, v{b}
    v_lshlrev_b32 v{b}, 4, v{b}
    v_lshlrev_b32 v{c_}, 4, v{c_}
    """)
    for j in range(4):
        k.e(f"""
        v_lshl_add_u32 v{vDq+j}, v{a}, 13, v{b if j % 2 == 0 else c_}
        v_add_u32 v{vDq+j}, {j*(65536-1024)}, v{vDq+j}
        """)
    k.e(f"""
    s_waitcnt lgkmcnt(0)
    s_mov_b32 s{sQ}, s48
    s_mov_b32 s{sQ+1}, s49
    s_mov_b32 s{sQ+2}, {576*4096*2}
    s_mov_b32 s{sQ+3}, 0x00020000
    s_add_u32 s{sH}, s52, {WS_H1}
    s_addc_u32 s{sH+1}, s53, 0
    s_mov_b32 s{sH+2}, {ACT_BYTES}
    s_mov_b32 s{sH+3}, 0x00020000
    s_mov_b32 s{sK}, s44
    s_mov_b32 s{sK+1}, s45
    s_mov_b32 s{sK+2}, {16*2048*128*2}
    s_mov_b32 s{sK+3}, 0x00020000
    s_mov_b32 s{sV}, s46
    s_mov_b32 s{sV+1}, s47
    s_mov_b32 s{sV+2}, {16*2048*128*2}
    s_mov_b32 s{sV+3}, 0x00020000
    s_mov_b32 s{sO}, s50
    s_mov_b32 s{sO+1}, s51
    s_mov_b32 s{sO+2}, {576*4096*2}
    s_mov_b32 s{sO+3}, 0x00020000
    s_add_u32 s{sP}, s52, {WS_PART}
    s_addc_u32 s{sP+1}, s53, 0
    s_mov_b32 s{sP+2}, {ACT_BYTES*8}
    s_mov_b32 s{sP+3}, 0x00020000
    """)
    PX = PairX(k, 0, sP, sPoff, sWave, 60, vL0, vL1, dict(z=31, f=0, fv=t[7], rx=188, sel=220, rx9=32, pk=156), fin_flags=stf)
    for kk, vv in px_opts.items(): setattr(PX, kk, vv)
    tiles = [("q", i) for i in range(18)] + [("k", 0)]
    for j in range(7): tiles += [("k", j + 1), ("v", j)]
    tiles += [("v", 7)] + [("o", i) for i in range(18)]
    tidx = {x: i for i, x in enumerate(tiles)}
    def xload(i):
        return [gload(Bf(i, 0), V(vL0), sH, f"s{sHoff}", 0, ("X", i)), gload(Bf(i, 1), V(vL1), sH, f"s{sHoff}", 0, ("X", i)),
                salu(f"s_add_u32 s{sHoff}, s{sHoff}, 1024")]
    def dmat(tl):
        if tl >= len(tiles): return []
        kind, i = tiles[tl]
        L = [salu(f"s_add_u32 m0, s{sM0}, {(tl % NS) * SLOT}")]
        vd, srd, so = dict(q=(vDq, sQ, sQoff), k=(vDk, sK, sKoff), v=(vDk, sV, sVoff), o=(vDo, sO, sOoff))[kind]
        for j in range(4): L.append(dma(V(vd + j), srd, f"s{so}", j * 1024, ("T", tl)))
        if kind == "q":
            L.append(salu(f"s_add_u32 s{so}, s{so}, {32*8192}"))
        elif kind in "kv": L.append(salu(f"s_add_u32 s{so}, s{so}, 16384"))
        else:
            if i == 8: L = [valu("v_xor_b32", V(vd + j), f"s{PX.sSw}", V(vd + j)) for j in range(4)] + L
            if i == 9: L += [valu("v_xor_b32", V(vd + j), f"s{PX.sSw}", V(vd + j)) for j in range(4)]
            if i % 2 == 0: L.append(salu(f"s_add_u32 s{so}, s{so}, {128*1152}"))
            elif i in (7, 9):
                L.append(salu(f"s_sub_u32 s{so}, s{so}, {128*1152}")); L.append(salu(f"s_add_u32 s{so}, s{so}, s{PX.sJ}"))
            else: L.append(salu(f"s_sub_u32 s{so}, s{so}, {128*1152-128}"))
        return L
    if stamps:
        k.add(stamp_i(1))
    k.e(f"""
    s_add_u32 s44, s52, {WS_TAB}
    s_addc_u32 s45, s53, 0
    s_mov_b32 s46, 4608
    s_mov_b32 s47, 0x00020000
    s_lshl_b32 s42, s{sWave}, 10
    s_add_u32 m0, s42, {NS*SLOT}
    """)
    k.add(dma(V(vL0), 44, "s42", 0, ("T", 0)))
    k.e(f"s_mov_b32 m0, {NS*SLOT+4096}\ns_movk_i32 s42, 4096")
    k.add(dma(V(vL0), 44, "s42", 0, ("T", 0)))
    k.add(xload(0))
    for tl in range(NS - 1):
        k.add(dmat(tl))
        if tl + 1 < XR: k.add(xload(tl + 1))
    k.e(f"v_lshlrev_b32 v{vTab}, 6, v{vg}\nv_add_u32 v{vTab}, {NS*SLOT}, v{vTab}")
    PX.setup(52, 53); PX.chunk0_off(sOoff)
    for j in range(4):
        k.e(f"""
        v_lshl_add_u32 v{vDk+j}, v{a}, 8, v{b if j % 2 == 0 else c_}
        v_add_u32 v{vDk+j}, {j*1024}, v{vDk+j}
        v_mul_u32_u24 v{vDo+j}, 1152, v{a}
        v_add_u32 v{vDo+j}, v{vDo+j}, v{b if j % 2 == 0 else c_}
        v_add_u32 v{vDo+j}, {j*(9216-1024)}, v{vDo+j}
        """)
    tr_addrs_F(k, vT[0], vg, vr, vc, a, b, c_)
    k.e(f"""
    v_and_b32 v{a}, 15, v{vl}
    v_and_b32 v{b}, 6, v{a}
    v_lshrrev_b32 v{c_}, 3, v{a}
    v_or_b32 v{b}, v{b}, v{c_}
    v_lshrrev_b32 v{c_}, 1, v{vg}
    v_xor_b32 v{b}, v{b}, v{c_}
    v_lshlrev_b32 v{a}, 7, v{a}
    v_and_b32 v{c_}, 1, v{vg}
    v_lshl_add_u32 v{a}, v{c_}, 3, v{a}
    """)
    for u in range(4):
        k.e(f"""
        v_xor_b32 v{c_}, {u<<1}, v{b}
        v_lshl_add_u32 v{vK[0]+u}, v{c_}, 4, v{a}
        v_add_u32 v{vK[1]+u}, 0x10000, v{vK[0]+u}
        v_add_u32 v{vT[1]+u}, 0x10000, v{vT[0]+u}
        """)
    k.e(f"s_mov_b32 s58, 0x{int.from_bytes(__import__('struct').pack('<f', th), 'little'):08x}")
    k.e("s_nop 1")
    def slot(tl): return (tl % NS) // 4, ((tl % NS) % 4) * SLOT
    def trfrag(tl, nb3, off):
        hi, so = slot(tl)
        return lambda dst: [dsr_tr(dst.sub(0, 2), V(vT[hi] + nb3), so + off), dsr_tr(dst.sub(2, 2), V(vT[hi] + nb3), so + off + 2048)]
    P = Pipe(ring, cap=cap)
    for i_ in range(576): P.capov[i_] = qcap
    dm = P.stream("dma"); ex = P.stream("exp"); cv = P.stream("cvt"); mx = P.stream("max"); ep = P.stream("ep")
    for tl in range(len(tiles)): P.tile_tags[tl] = [("T", tl)]
    qlast = {}
    for tl in range(18):
        for nb in range(16):
            f = P.frag(tl, trfrag(tl, nb & 3, (nb >> 2) * 4096))
            for mb in range(2):
                qlast[(nb, mb)] = P.m(f, lambda Ar, nb=nb, mb=mb, tl=tl: mfma(QA(nb, mb), Ar, Bf(tl, mb), 0 if tl == 0 else None))
    nq = len(P.mf)
    md = P.stream("mod"); md2 = P.stream("mod2"); xl = P.stream("xl"); lastmod = {}
    def moditems(i):
        L = []
        tb = TB(i)
        for q in range(4): L.append(I(f"ds_read_b128 {tb.sub(4*q, 4)}, v{vTab} offset:{i*256+16*q}", "dsr", rd=(V(vTab),), wr=(tb.sub(4*q, 4),)))
        L.append(WaitLg([tb])); L.append(WaitVm([("X", i)]))
        for mb in range(2):
            b = Bf(i, mb)
            for r in range(4):
                t0, t1 = V(t[(r % 2) * 2]), V(t[(r % 2) * 2 + 1])
                for hsel, tt_ in ((0, t0), (1, t1)):
                    e = 2 * r + hsel
                    L.append(valu("v_fma_mix_f32", tt_, b[r], tb[e], tb[8 + e], extra=f" op_sel:[{hsel},0,0] op_sel_hi:[1,0,0]"))
                L.append(valu("v_cvt_pk_bf16_f32", b[r], t0, t1))
        return L
    P.pre[0] = moditems(0)
    for i in range(1, 18):
        for q, x in enumerate(moditems(i)):
            e0 = 32 * (i - 1)
            if q < 4: md2.append(Item(x, e0 - 12 + 2 * q, bar=0, deadline=max(e0 - 10 + 2 * q, 1), after=((lastmod[i - 2],) if i >= 3 else ())))
            else: md.append(Item(x, e0 - (2 if q < 6 else 0), deadline=e0 + 2 + (q - 4) * 27 // 25, after=((md2[-1],) if q == 4 else ())))
        lastmod[i] = md[-1]
        if i >= XR:
            for x in xload(i): xl.append(Item(x, 32 * (i - XR) + 31, deadline=32 * (i - XR) + 36))
    P.pre[nq] = [valu("v_mov_b32", ONES[u], "0x3f803f80") for u in range(4)]
    for h in range(2):
        for s in range(4):
            for mb in range(2):
                for hb in range(2):
                    nb = h * 8 + s * 2 + hb
                    src = QA(nb, mb)
                    for q in range(2):
                        cv.append(Item(valu("v_cvt_pk_bf16_f32", Q(h, mb, s)[2 * hb + q], src[2 * q], src[2 * q + 1]), (nq - 1 if (Q(h, mb, s).set() & (Bf(17, 0).set() | Bf(17, 1).set() | TB(17).set())) else qlast[(nb, mb)] + 4), deadline=nq - 1, slack=(0 if (Q(h, mb, s).set() & (Bf(17, 0).set() | Bf(17, 1).set() | TB(17).set())) else 4)))
    def qk(j):
        tl = tidx[("k", j)]; hi, so = slot(tl)
        lastm = {}
        for kb in range(4):
            for s in range(4):
                def rdfn(dst, kb=kb, s=s):
                    o = so + (s >> 1) * 8192 + kb * 2048
                    return [dsr64(dst.sub(0, 2), V(vK[hi] + 2 * (s & 1)), o), dsr64(dst.sub(2, 2), V(vK[hi] + 2 * (s & 1) + 1), o)]
                f = P.frag(tl, rdfn)
                for hm in range(4):
                    def fn(Ar, kb=kb, s=s, hm=hm):
                        c = (0 if j == 0 else CI(hm)) if s == 0 else None
                        x = mfma(S(j, kb, hm), Ar, Q(hm >> 1, hm & 1, s), c); x.tag = ("qk", j, kb, hm); return x
                    lastm[(kb, hm)] = P.m(f, fn)
        return lastm
    Pk = lambda j, ks, hm: S(j, 2 * ks, hm)
    def pv(j):
        tl = tidx[("v", j)]
        firstm = {}; lastm = {}
        for ks in range(2):
            for hm in range(4):
                def fn(Ar, ks=ks, hm=hm):
                    x = mfma(LS(hm), ONES, Pk(j, ks, hm), 0 if (j == 0 and ks == 0) else None); x.tag = ("pv", j, ks, hm); return x
                firstm[(ks, hm)] = P.m(None, fn)
            for db in range(8):
                f = P.frag(tl, trfrag(tl, db & 3, (db >> 2) * 8192 + ks * 4096))
                for hm in range(4):
                    def fn(Ar, ks=ks, hm=hm, db=db):
                        x = mfma(O(hm, db), Ar, Pk(j, ks, hm), 0 if (j == 0 and ks == 0) else None); x.tag = ("pv", j, ks, hm); return x
                    lastm[(db, hm)] = P.m(f, fn)
        return firstm, lastm
    def rowmax_xlane(regs, tmp):
        L = []
        for op in ("v_permlane16_swap_b32", "v_permlane32_swap_b32"):
            for r, tt in zip(regs, tmp): L.append(valu("v_mov_b32", tt, r))
            for r, tt in zip(regs, tmp): L.append(I(f"{op} {r}, {tt}", "valu", rd=(r, tt), wr=(r, tt)))
            for r, tt in zip(regs, tmp): L.append(valu("v_max_f32", r, r, tt))
        return L
    def max_items(j, lastm, dl):
        items = []
        for kb in range(4):
            for hm in range(4):
                s_ = S(j, kb, hm); e = lastm[(kb, hm)] + 4
                if kb == 0:
                    items.append(Item(valu("v_max3_f32", MX(hm), s_[0], s_[1], s_[2]), e, deadline=dl, slack=4))
                    items.append(Item(valu("v_max_f32", MX(hm), MX(hm), s_[3]), e, deadline=dl, slack=4))
                else:
                    items.append(Item(valu("v_max3_f32", MX(hm), MX(hm), s_[0], s_[1]), e, deadline=dl, slack=4))
                    items.append(Item(valu("v_max3_f32", MX(hm), MX(hm), s_[2], s_[3]), e, deadline=dl, slack=4))
        return items
    def exp_items(j, gate, dls):
        for ks in range(2):
            for hm in range(4):
                for hb in range(2):
                    s_ = S(j, 2 * ks + hb, hm)
                    for q in range(2):
                        es = []
                        for r in (2 * q, 2 * q + 1):
                            x = valu("v_exp_f32", s_[r], s_[r], trans=True); x.tag = ("exp", j, s_[r])
                            it = Item(x, -1, deadline=dls[(ks, hm)] - 3, after=gate(hm, s_[r])); ex.append(it); es.append(it)
                        x = valu("v_cvt_pk_bf16_f32", Pk(j, ks, hm)[2 * hb + q], s_[2 * q], s_[2 * q + 1]); x.tag = ("cvt", j, ks, hm, Pk(j, ks, hm)[2 * hb + q], s_[2 * q], s_[2 * q + 1])
                        cv.append(Item(x, -1, deadline=dls[(ks, hm)] - 2, after=tuple(es)))
    lq = {0: qk(0)}
    n0 = len(P.mf)
    lq[1] = qk(1)
    tmpm = [V(x) for x in t[:4]]
    for it in max_items(0, lq[0], n0 - 1): mx.append(it)
    pre = rowmax_xlane([MX(hm) for hm in range(4)], tmpm)
    for hm in range(4):
        for r in range(4): pre.append(valu("v_sub_f32", CI(hm)[r], 0, MX(hm)))
    P.pre[n0] = pre
    subs0 = {}
    for ks in range(2):
        for hm in range(4):
            for hb in range(2):
                s_ = S(0, 2 * ks + hb, hm)
                for r in range(4):
                    it = Item(valu("v_add_f32", s_[r], s_[r], CI(hm)[0]), n0, deadline=n0 + 58 + 30 * ks); mx.append(it); subs0[s_[r].lo] = it
    fp = {}; lp = {}
    chk = {}
    for j in range(8):
        fp[j], lp[j] = pv(j)
        if j + 2 < 8: lq[j + 2] = qk(j + 2)
    exp_items(0, lambda hm, r: (subs0[r.lo],), fp[0])
    slowlabs = {}
    for j in range(1, 8):
        endqk = max(lq[j].values())
        dl = endqk + 8
        for it in max_items(j, lq[j], dl): mx.append(it)
        mx.append(Item(valu("v_max3_f32", tmpm[0], MX(0), MX(1), MX(2)), -1, deadline=dl + 1))
        mx.append(Item(valu("v_max_f32", tmpm[0], tmpm[0], MX(3)), -1, deadline=dl + 1))
        mx.append(Item(I(f"v_cmp_lt_f32 vcc, s58, {tmpm[0]}", "valu", rd=(tmpm[0],)), -1, deadline=dl + 2))
        sl = k.lab("slow"); bk = k.lab("back"); slowlabs[j] = (sl, bk)
        x = I(f"s_cbranch_vccnz {sl}\n{bk}:", "other"); x.tag = ("chk", j)
        chk[j] = Item(x, -1, deadline=dl + 3); mx.append(chk[j])
        exp_items(j, lambda hm, r, j=j: (chk[j],), fp[j])
    na = len(P.mf)
    for i in range(nq, na): P.capov[i] = acap
    OB = Q
    inv = [MX(hm) for hm in range(4)]
    invit = {}
    for hm in range(4):
        a1 = Item(valu("v_accvgpr_read_b32", inv[hm], LS(hm)[0]), fp[7][(1, hm)] + 4, deadline=na - 1, slack=4); ep.append(a1)
    for hm in range(4):
        a2 = Item(valu("v_rcp_f32", inv[hm], inv[hm], trans=True), -1, deadline=na - 1); ep.append(a2)
    tt = [V(x) for x in t]
    for db in range(8):
        for hm in range(4):
            o = O(hm, db); e = lp[7][(db, hm)] + 4
            tq = tt[(hm % 2) * 4:(hm % 2) * 4 + 4]
            for r in range(4): ep.append(Item(valu("v_accvgpr_read_b32", tq[r], o[r]), e, deadline=na - 1, slack=4))
            for r in range(4): ep.append(Item(valu("v_mul_f32", tq[r], tq[r], inv[hm]), e, deadline=na - 1, slack=4))
            dst = OB(hm >> 1, hm & 1, db >> 1)
            for q in range(2): ep.append(Item(valu("v_cvt_pk_bf16_f32", dst[2 * (db & 1) + q], tq[2 * q], tq[2 * q + 1]), e, deadline=na - 1, slack=4))
    DM = A(200, 4)
    def spread(st, L, e0, e1):
        nv = sum(1 for x in L if x.kind == "vmem"); e = e0; step = (e1 - e0) // max(nv, 1)
        for x in L:
            st.append(Item(x, e, deadline=e + 20))
            if x.kind == "vmem": e += step
    if pf_own:
        L = []
        for srd_ in (sK, sV): L += pf_contig(vL0, DM, srd_, 56, 57, 40, 2048 * 256, 41, 8192, sWave, 4, base=1536 * 256)
        spread(P.stream("pf"), L, 8, 250)
        spread(P.stream("pf"), pf_contig(vL0, DM, sO, 56, 57, 40, 256 * 1152, 41, 16 * 1152, sWave, 4), 300, nq - 10)
    if prefetch:
        L = [valu("v_lshrrev_b32", V(t[6]), 4, V(vL0))] + srd_txt(44, 4, 5, 576 * 4608 * 2) + srd_txt(48, 6, 7, 576 * 4608 * 2)
        L += pf_rows(t[6], t[4], t[5], DM, [44, 48], 56, 57, 40, 576, 41, 36, 9216, 36, sWave, 4)
        L += srd_txt(44, 54, 55, 576 * 4608 * 2) + pf_contig(vL0, DM, 44, 56, 57, 40, 288 * 1152, 41, 18 * 1152, sWave, 4)
        spread(P.stream("pf"), L, nq + 4, nq + 700)
    if coderef:
        cr = P.stream("cr")
        for e in (300, nq + 250, nq + 750):
            for x in pf_code(k, vL0, DM, 80, 43, name, done, 2): cr.append(Item(x, e, deadline=e + 30))
    PX.pf_items(P.stream("pf2"), nq + 200, na - 150, DM)
    PX.RX9 = 32
    accp = lambda p, nbl, mb: V((172 if p == 9 else 124 + (p & 1) * 16) + (nbl * 2 + mb) * 4, 4)
    firstp = {}; lastp = {}; addf = {}
    for ch in range(9):
        for h in range(2):
            tl = tidx[("o", 2 * ch + h)]
            for pair in range(2):
                p = 2 * ch + pair
                for ks in range(4):
                    for nbl in range(2):
                        f = P.frag(tl, trfrag(tl, pair * 2 + nbl, ks * 4096))
                        for mb in range(2):
                            i = P.m(f, lambda Ar, p=p, nbl=nbl, mb=mb, ks=ks, h=h: mfma(accp(p, nbl, mb), Ar, OB(h, mb, ks), 0 if (ks == 0 and h == 0) else None))
                            firstp.setdefault(p, i); lastp[p] = i
                if h == 1 and p >= 10: addf[p], lastp[p] = PX.add_mfmas(P, accp, p)
    addf[9], lastp[9] = PX.add_mfmas(P, accp, 9)
    selk = Kern("tmp"); PX.k, kk = selk, PX.k
    selk.e(f"v_mbcnt_lo_u32_b32 v{t[2]}, -1, 0\nv_mbcnt_hi_u32_b32 v{t[2]}, -1, v{t[2]}")
    PX.sel_setup(t[2], t[0], t[1]); PX.k = kk
    P.pre[na] = P.pre.get(na, []) + selk.p
    PX.mode_items(P.stream("fl"), fp[6][(0, 0)], na + 20)
    PX.build(P, accp, firstp, lastp, addf, 32)
    if stamps:
        P.pre[0] = [stamp_i(2)] + P.pre.get(0, [])
        P.pre[nq] = [stamp_i(3)] + P.pre.get(nq, [])
        P.pre[na] = [stamp_i(4)] + P.pre.get(na, [])
    P.plan()
    for T in range(1, len(tiles)):
        nt = T - 2 + NS
        if nt >= NS - 1:
            sp = dmaspace // 2 if tiles[T - 1][0] in "qo" else dmaspace
            q = -1
            for ins in dmat(nt):
                if ins.kind == "vmem": q += 1
                e = P.eT[T] + max(q, 0) * sp
                dm.append(Item(ins, e, bar=T, deadline=e + 6))
    body = P.emit()
    PX.verify(body)
    k.warm = warm; k.sWave = sWave
    k.add(marker("WARM_HERE")); k.add(marker("WARM_BEGIN"))
    k.add(body)
    k.add(marker("WARM_END"))
    if stamps:
        k.add(stamp_i(5))
        stamp_flush(k, stamps, 7)
    k.e(f"{done}:\ns_endpgm")
    PX.emit_tail()
    for j in range(1, 8):
        pos = next(i for i, x in enumerate(body) if isinstance(x, I) and x.tag == ("chk", j))
        before = [x for x in body[:pos] if isinstance(x, I) and x.tag]
        after = [x for x in body[pos:] if isinstance(x, I) and x.tag]
        assert not any(x.tag[0] == "qk" and x.tag[1] == j + 1 for x in before)
        assert not any(x.tag[0] == "qk" and x.tag[1] == j for x in after)
        assert not any(x.tag[0] in ("pv", "exp", "cvt") and x.tag[1] == j - 2 for x in after)
        exped = {x.tag[2].lo for x in before if x.tag[0] == "exp" and x.tag[1] == j - 1}
        cvted = {}
        dead = set()
        for x in before:
            if x.tag[0] == "cvt" and x.tag[1] == j - 1:
                cvted[x.tag[4].lo] = (x.tag[2], x.tag[3]); dead |= {x.tag[5].lo, x.tag[6].lo}
        live_p = {(x.tag[2], x.tag[3]) for x in after if x.tag[0] == "pv" and x.tag[1] == j - 1}
        started = {(x.tag[2], x.tag[3]) for x in before if x.tag[0] == "pv" and x.tag[1] == j - 1}
        sl, bk = slowlabs[j]
        L = [I(f"{sl}:"), I("s_nop 15", "nop")]
        L += rowmax_xlane([MX(hm) for hm in range(4)], tmpm)
        F = tmpm; T0, T1 = V(t[4]), V(t[5])
        for hm in range(4):
            L.append(valu("v_max_f32", MX(hm), 0, MX(hm)))
            L.append(valu("v_ceil_f32", MX(hm), MX(hm)))
            L.append(valu("v_exp_f32_e64", F[hm], f"-{MX(hm)}", trans=True)); L[-1].rd |= MX(hm).set()
            for r in range(4): L.append(valu("v_sub_f32", CI(hm)[r], CI(hm)[r], MX(hm)))
            for kb in range(4):
                for r in range(4): L.append(valu("v_sub_f32", S(j, kb, hm)[r], S(j, kb, hm)[r], MX(hm)))
            for kb in range(4):
                for r in range(4):
                    reg = S(j - 1, kb, hm)[r]
                    if reg.lo in cvted:
                        if cvted[reg.lo] in live_p:
                            L.append(valu("v_lshlrev_b32", T0, 16, reg))
                            L.append(valu("v_and_b32", T1, "0xffff0000", reg))
                            L.append(valu("v_mul_f32", T0, T0, F[hm])); L.append(valu("v_mul_f32", T1, T1, F[hm]))
                            L.append(valu("v_cvt_pk_bf16_f32", reg, T0, T1))
                    elif reg.lo in dead: pass
                    elif reg.lo in exped: L.append(valu("v_mul_f32", reg, reg, F[hm]))
                    else: L.append(valu("v_sub_f32", reg, reg, MX(hm)))
            accs = [LS(hm)] + [O(hm, db) for db in range(8)]
            for ac in accs:
                written = any(x.kind == "mfma" and x.wr == ac.set() and x.tag and x.tag[0] == "pv" for x in before)
                if not written: continue
                for r in range(4):
                    L.append(valu("v_accvgpr_read_b32", T0, ac[r])); L.append(valu("v_mul_f32", T0, T0, F[hm])); L.append(valu("v_accvgpr_write_b32", ac[r], T0))
        L += [I("s_nop 1", "nop"), I(f"s_branch {bk}")]
        k.add(L)
    return k, (k, 256, 256, NS * SLOT + 5120)

if __name__ == "__main__":
    for nm, kw in dict(base={}, th0=dict(th=0.0)).items():
        k, l = gen_ka(stamps=True, **kw)
        open(f"t_ka_{nm}.s", "w").write(build([l], [k]))
        print(nm, "pads", k.npad, "instrs", len(k.final))
```

```python
from fw import *
from sched import *
from pairx import PairX
from pf import *

def stamp(k, i, sreg=90):
    k.e(f"s_memtime s[{sreg+2*i}:{sreg+2*i+1}]")

def lane_consts(k, vl, vg, vr, vc):
    k.e(f"""
    v_and_b32 v{vl}, 63, v0
    v_lshrrev_b32 v{vg}, 4, v{vl}
    v_bfe_u32 v{vr}, v{vl}, 2, 2
    v_and_b32 v{vc}, 3, v{vl}
    """)

def tr_addrs_F(k, dst, vg, vr, vc, t0, t1, t2):
    k.e(f"""
    v_lshl_add_u32 v{t0}, v{vg}, 2, v{vr}
    v_bfe_u32 v{t1}, v{t0}, 1, 2
    v_lshlrev_b32 v{t1}, 1, v{t1}
    v_lshrrev_b32 v{t2}, 1, v{vg}
    v_or_b32 v{t1}, v{t1}, v{t2}
    v_lshrrev_b32 v{t2}, 1, v{vc}
    v_xor_b32 v{t1}, v{t1}, v{t2}
    v_lshlrev_b32 v{t0}, 7, v{t0}
    v_and_b32 v{t2}, 1, v{vc}
    v_lshl_add_u32 v{t0}, v{t2}, 3, v{t0}
    """)
    for nb in range(4):
        k.e(f"""
        v_xor_b32 v{t2}, {nb<<1}, v{t1}
        v_lshl_add_u32 v{dst+nb}, v{t2}, 4, v{t0}
        """)

def gen_kb(name="kb_kernel", stamps=False, R=6, cap=8, nodma=False, nostore=False, dmaspace=5, stf="", prefetch=False, warm=0, dbg2=False, pfx=900, coderef=True, pfstep=150, px_opts={}):
    k = Kern(name)
    SLOT = 36864; NS = 4
    sW, sD, sH, sP = 8, 12, 16, 20
    sWoff, sDoff, sHoff, sPoff, sM0, sWave = 24, 25, 26, 27, 28, 29
    vD1 = 1; vD2 = 10; vE, vO = 19, 20; vT = 21; vL0, vL1 = 25, 26
    vE2, vO2, vT2 = 248, 249, 250
    t = list(range(28, 40))
    G = lambda nb, mb: V(40 + (nb * 2 + mb) * 4, 4)
    U = lambda nb, mb: V(184 + (nb * 2 + mb) * 4, 4) if nb < 8 else A((((nb - 8) * 2) + mb) * 4, 4)
    ring = [A(80 + 4 * i, 4) for i in range(R)]
    Bf = lambda s, mb: A(112 + (s * 2 + mb) * 4, 4)
    done = k.lab("done")
    k.e(f"""
    s_cmp_ge_u32 s2, 256
    s_cbranch_scc1 {done}
    """)
    if stamps: stamp_begin(k)
    k.e(f"""
    s_load_dwordx4 s[32:35], s[0:1], {KA['wg']}
    s_load_dwordx2 s[36:37], s[0:1], {KA['wd']}
    s_load_dwordx2 s[38:39], s[0:1], {KA['ws']}
    v_lshrrev_b32 v{t[0]}, 6, v0
    s_nop 0
    v_readfirstlane_b32 s{sWave}, v{t[0]}
    """)
    k.add(ids(40, 41))
    vl, vg, vr, vc = t[0], t[1], t[2], t[3]
    lane_consts(k, vl, vg, vr, vc)
    k.e(f"""
    s_mul_i32 s{sM0}, s{sWave}, 9216
    s_lshr_b32 s42, s{sWave}, 1
    s_mul_i32 s{sWoff}, s42, {16*9216}
    s_mul_i32 s43, s40, 576
    s_add_u32 s{sWoff}, s{sWoff}, s43
    s_mul_i32 s43, s40, 288
    s_mul_i32 s44, s{sWave}, 72
    s_add_u32 s43, s43, s44
    s_mul_i32 s{sDoff}, s43, 1152
    s_lshl_b32 s43, s41, 3
    s_lshl_b32 s44, s{sWave}, 1
    s_add_u32 s43, s43, s44
    s_mul_i32 s{sHoff}, s43, 18432
    s_lshr_b32 s44, s40, 1
    s_mul_i32 s44, s44, {ACT_BYTES}
    s_add_u32 s{sPoff}, s{sHoff}, s44
    s_and_b32 s45, s{sWave}, 1
    s_cmp_eq_u32 s45, 0
    s_waitcnt lgkmcnt(0)
    s_cselect_b32 s{sW}, s32, s34
    s_cselect_b32 s{sW+1}, s33, s35
    s_mov_b32 s{sW+2}, {576*4608*2}
    s_mov_b32 s{sW+3}, 0x00020000
    s_mov_b32 s{sD}, s36
    s_mov_b32 s{sD+1}, s37
    s_mov_b32 s{sD+2}, {576*4608*2}
    s_mov_b32 s{sD+3}, 0x00020000
    s_add_u32 s{sH}, s38, {WS_H2}
    s_addc_u32 s{sH+1}, s39, 0
    s_mov_b32 s{sH+2}, {ACT_BYTES}
    s_mov_b32 s{sH+3}, 0x00020000
    s_add_u32 s{sP}, s38, {WS_PART}
    s_addc_u32 s{sP+1}, s39, 0
    s_mov_b32 s{sP+2}, {ACT_BYTES*8}
    s_mov_b32 s{sP+3}, 0x00020000
    s_movk_i32 s46, 1821
    s_movk_i32 s47, 9216
    v_lshlrev_b32 v{vL0}, 4, v{vl}
    v_add_u32 v{vL1}, 18432, v{vL0}
    """)
    PX = PairX(k, 1, sP, sPoff, sWave, 60, vL0, vL1, dict(z=27, f=254, fv=255, rx=112, sel=152, rx9=144, pk=216), fin_flags=stf)
    for kk, vv in px_opts.items(): setattr(PX, kk, vv)
    a, b, c_, d = t[4], t[5], t[6], t[7]
    for j in range(9):
        k.e(f"""
        v_add_u32 v{a}, {64*j}, v{vl}
        v_mul_u32_u24 v{b}, s46, v{a}
        v_lshrrev_b32 v{b}, 16, v{b}
        v_mul_u32_u24 v{c_}, 36, v{b}
        v_sub_u32 v{a}, v{a}, v{c_}
        v_bfe_u32 v{c_}, v{b}, 2, 1
        v_lshlrev_b32 v{c_}, 1, v{c_}
        v_xor_b32 v{a}, v{a}, v{c_}
        v_lshlrev_b32 v{a}, 4, v{a}
        v_mad_u32_u24 v{vD1+j}, v{b}, s47, v{a}
        """)
        if j % 4: k.e(f"v_subrev_u32 v{vD1+j}, {1024*(j%4)}, v{vD1+j}")
    def dma1(tile):
        L = []
        for j in range(9):
            if j % 4 == 0: L.append(salu(f"s_add_u32 m0, s{sM0}, {(tile % NS) * SLOT + (j // 4) * 4096}"))
            L.append(dma(V(vD1 + j), sW, f"s{sWoff}", (j % 4) * 1024, ("T", tile)))
        L.append(salu(f"s_add_u32 s{sWoff}, s{sWoff}, {32*9216}"))
        return L
    def bload(s):
        return [gload(Bf(s, 0), V(vL0), sH, f"s{sHoff}", 0, ("B", s)), gload(Bf(s, 1), V(vL1), sH, f"s{sHoff}", 0, ("B", s)),
                salu(f"s_add_u32 s{sHoff}, s{sHoff}, 1024")]
    def dma2(tile):
        L = []
        for j in range(9):
            if j % 4 == 0: L.append(salu(f"s_add_u32 m0, s{sM0}, {(tile % NS) * SLOT + (j // 4) * 4096}"))
            L.append(dma(V(vD2 + j), sD, f"s{sDoff}", (j % 4) * 1024, ("T", tile)))
        if tile == 22:
            L = [valu("v_xor_b32", V(vD2 + j), f"s{PX.sSw}", V(vD2 + j)) for j in range(9)] + L + [valu("v_xor_b32", V(vD2 + j), f"s{PX.sSw}", V(vD2 + j)) for j in range(9)]
        L.append(salu(f"s_add_u32 s{sDoff}, s{sDoff}, s{PX.sJ}") if tile in (21, 22) else salu(f"s_add_u32 s{sDoff}, s{sDoff}, 128"))
        return L
    def dmat(tile):
        if tile < 18: return dma1(tile) + bload(tile)
        if tile < 27: return dma2(tile)
        return []
    if stamps and not dbg2:
        k.add(stamp_i(1))
    for tl in range(NS - 1):
        k.add(dmat(tl))
    PX.setup(38, 39); PX.chunk0_off(sDoff)
    k.e(f"""
    v_lshl_add_u32 v{a}, v{vg}, 2, v{vr}
    v_mul_u32_u24 v{a}, 576, v{a}
    v_lshl_add_u32 v{a}, v{vc}, 3, v{a}
    v_and_b32 v{b}, 1, v{vg}
    v_lshlrev_b32 v{b}, 5, v{b}
    v_add_u32 v{vE}, v{a}, v{b}
    v_sub_u32 v{vO}, v{a}, v{b}
    """)
    tr_addrs_F(k, vT, vg, vr, vc, a, b, c_)
    for nb in range(4):
        k.e(f"v_add_u32 v{vT+nb}, {(18 % NS) * SLOT}, v{vT+nb}")
    k.e(f"""
    v_lshrrev_b32 v{a}, 3, v{vl}
    v_mul_u32_u24 v{a}, 1152, v{a}
    v_and_b32 v{b}, 7, v{vl}
    v_lshlrev_b32 v{c_}, 1, v{vg}
    v_xor_b32 v{b}, v{b}, v{c_}
    v_xor_b32 v{b}, s45, v{b}
    v_xor_b32 v{c_}, 1, v{b}
    v_lshl_add_u32 v{b}, v{b}, 4, v{a}
    v_lshl_add_u32 v{c_}, v{c_}, 4, v{a}
    """)
    for j in range(9):
        k.e(f"v_add_u32 v{vD2+j}, {9216*j - 1024*(j%4)}, v{b if j % 2 == 0 else c_}")
    k.e("s_nop 1")

    def slot_delta(tile):
        return SLOT if tile % NS else -(NS - 1) * SLOT
    P = Pipe(ring, cap=cap)
    dm = P.stream("dma")
    for tl in range(18):
        P.tile_tags[tl] = [("T", tl), ("B", tl)]
        fi = 0
        for nb in range(18):
            for mat in range(2):
                def rdfn(dst, nb=nb, mat=mat, tl=tl, fi=fi):
                    ad = V((vE, vE2)[tl % 2]) if nb % 2 == 0 else V((vO, vO2)[tl % 2])
                    L = []
                    o = mat * 9216 + nb * 32
                    return L + [dsr_tr(dst.sub(0, 2), ad, o), dsr_tr(dst.sub(2, 2), ad, o + 18432)]
                f = P.frag(tl, rdfn)
                for mb in range(2):
                    acc = (G if mat == 0 else U)(nb, mb)
                    i = P.m(f, lambda Ar, acc=acc, tl=tl, mb=mb: mfma(acc, Ar, Bf(tl, mb), 0 if tl == 0 else None))
                fi += 1
    n1 = len(P.mf)
    act = []
    H = lambda ks, mb: V(40 + (ks * 2 + mb) * 4, 4)
    for a_ in range(9):
        for mb in range(2):
            for hb in range(2):
                nb = 2 * a_ + hb
                g = G(nb, mb); u = U(nb, mb)
                if u.k == "a":
                    tmp = V(t[4] , 4)
                    for r in range(4): act.append(valu("v_accvgpr_read_b32", tmp[r], u[r]))
                    u = tmp
                for r in range(4): act.append(valu("v_max_f32", g[r], 0, g[r]))
                act.append(valu("v_pk_mul_f32", g.sub(0, 2), g.sub(0, 2), u.sub(0, 2)))
                act.append(valu("v_pk_mul_f32", g.sub(2, 2), g.sub(2, 2), u.sub(2, 2)))
                dst = H(a_, mb)
                act.append(valu("v_cvt_pk_bf16_f32", dst[2 * hb], g[0], g[1]))
                act.append(valu("v_cvt_pk_bf16_f32", dst[2 * hb + 1], g[2], g[3]))
    accp = lambda p, nbl, mb: V((232 if p == 9 else 184 + (p & 1) * 16) + (nbl * 2 + mb) * 4, 4)
    firstp = {}; lastp = {}; addf = {}
    for ch in range(9):
        tl = 18 + ch
        P.tile_tags[tl] = [("T", tl)]
        for pair in range(2):
            p = 2 * ch + pair
            for ks in range(9):
                for nbl in range(2):
                    nb = pair * 2 + nbl
                    def rdfn(dst, nb=nb, ks=ks, tl=tl):
                        ad = V((vT, vT2)[tl % 2] + nb)
                        return [dsr_tr(dst.sub(0, 2), ad, ks * 4096), dsr_tr(dst.sub(2, 2), ad, ks * 4096 + 2048)]
                    f = P.frag(tl, rdfn)
                    for mb in range(2):
                        i = P.m(f, lambda Ar, p=p, nbl=nbl, mb=mb, ks=ks: mfma(accp(p, nbl, mb), Ar, H(ks, mb), 0 if ks == 0 else None))
                        firstp.setdefault(p, i); lastp[p] = i
            if p >= 10: addf[p], lastp[p] = PX.add_mfmas(P, accp, p)
    addf[9], lastp[9] = PX.add_mfmas(P, accp, 9)
    selk = Kern("tmp"); PX.k, kk = selk, PX.k
    PX.sel_setup(vl, t[4], t[5]); PX.k = kk
    act += selk.p
    if coderef:
        cr = P.stream("cr")
        for e in (400, 900):
            for x in pf_code(k, vL0, V(t[8], 4), 48, 52, name, done, 2): cr.append(Item(x, e, deadline=e + 30))
    PX.pf_items(P.stream("pf"), n1 - pfx, n1 - 100, V(t[8], 4))
    PX.mode_items(P.stream("fl"), n1 - 150, n1 + 20)
    PX.build(P, accp, firstp, lastp, addf, 36)
    P.pre[n1] = ([stamp_i(3)] if stamps else []) + act + ([stamp_i(4)] if stamps else [])
    if stamps: P.pre[0] = [stamp_i(2)]
    if stamps and dbg2 == 1:
        P.pre[0] = [stamp_i(1)]
        P.pre[n1] = [stamp_i(5)] + act
        for q, tl in enumerate((3, 8, 13)): P.pre[72 * tl] = [stamp_i(2 + q)]
    if stamps and dbg2 is True:
        P.pre[0] = []
        P.pre[n1] = act + [stamp_i(1)]
        for q, p in enumerate((4, 9, 13)): P.pre[firstp[p]] = [stamp_i(2 + q)]
    P.plan()
    misc = P.stream("misc")
    for tl in range(1, 27):
        if tl == 18: continue
        dl = hex(slot_delta(tl) & 0xffffffff)
        pairs = [(vE, vE2), (vO, vO2)] if tl < 18 else [(vT + q, vT2 + q) for q in range(4)]
        for pr in pairs:
            e = P.lastrdT[tl - 2] + 1 if tl >= 2 else -1
            misc.append(Item(valu("v_add_u32", V(pr[tl % 2]), dl, V(pr[1 - tl % 2])), max(e, P.eT[tl - 1] + 12), deadline=P.eT[tl] - 2))
    for T in range(1, 27):
        nt = T - 2 + NS
        if nt >= NS - 1:
            q = -1
            for ins in dmat(nt):
                if ins.kind == "vmem": q += 1
                if nodma and ins.kind == "vmem" and ins.tag[0] == "T" and nt >= nodma: continue
                dm.append(Item(ins, P.eT[T] + max(q, 0) * dmaspace, bar=T, deadline=P.eT[T] + max(q, 0) * dmaspace + 8 + (12 if nt == 22 else 0)))
    body = P.emit()
    PX.verify(body)
    k.warm = warm; k.sWave = sWave
    k.add(marker("WARM_HERE")); k.add(marker("WARM_BEGIN"))
    k.add(body)
    k.add(marker("WARM_END"))
    if stamps:
        if dbg2 != 1: k.add(stamp_i(5))
        stamp_flush(k, stamps, 7)
    k.e(f"{done}:\ns_endpgm")
    PX.emit_tail()
    return k, (k, 256, 256, NS * SLOT)

if __name__ == "__main__":
    for nm, kw in dict(base={}, nodma=dict(nodma=True), nodmast=dict(nodma=True, nostore=True), sp2=dict(dmaspace=2), r7=dict(R=7)).items():
        k, l = gen_kb(stamps=True, **kw)
        open(f"t_kb_{nm}.s", "w").write(build([l], [k]))
        print(nm, "pads", k.npad, "instrs", len(k.final))
```

```python
from fw import *
from sched import *

class PairX:
    def __init__(s, k, kidx, sP, sPoff, sWave, sbase, vL0, vL1, vreg, fin_flags=""):
        s.k = k; s.kidx = kidx; s.sP = sP; s.sPoff = sPoff; s.sWave = sWave
        s.sF = sbase; s.sMy = sbase + 4; s.sPa = sbase + 5; s.sX = sbase + 6; s.sFl = sbase + 7
        s.sA0, s.sA1, s.s8, s.s9, s.sB0, s.sB1 = [sbase + 8 + i for i in range(6)]
        s.sJ = sbase + 14; s.sSw = sbase + 15; s.sRole = sbase + 16
        s.vL = (vL0, vL1)
        s.vZ, s.vF, s.vFV = vreg['z'], vreg['f'], vreg['fv']
        s.RX = vreg['rx']; s.SEL = vreg['sel']; s.RX9 = vreg['rx9']; s.PK = vreg['pk']
        s.fin_flags = fin_flags
        s.tail = []
        s.rxf = ' sc1'; s.nofin = s.nosnd = s.finalt = s.norx = False; s.allsc1 = False; s.nodual = False; s.nost = False; s.nowait = False
        s.dpub = 1.5; s.dld = 2.0; s.dref = 1.5
    def setup(s, ws_lo, ws_hi):
        k = s.k
        k.e(f"""
        s_bfe_u32 s{s.sRole}, s2, 0x10003
        s_add_u32 s{s.sF}, s{ws_lo}, {WS_FLAG + s.kidx * 0x10000}
        s_addc_u32 s{s.sF+1}, s{ws_hi}, 0
        s_mov_b32 s{s.sF+2}, 0x10000
        s_mov_b32 s{s.sF+3}, 0x00020000
        s_lshl_b32 s{s.sMy}, s2, 2
        s_add_u32 s{s.sMy}, s{s.sMy}, s{s.sWave}
        s_lshl_b32 s{s.sMy}, s{s.sMy}, 6
        s_xor_b32 s{s.sPa}, s{s.sMy}, {8*4*64}
        s_getreg_b32 s{s.sX}, hwreg(HW_REG_XCC_ID, 0, 4)
        s_add_u32 s{s.sX}, s{s.sX}, 1
        v_mov_b32 v{s.vZ}, 0
        v_mov_b32 v{s.vFV}, s{s.sX}
        s_cmp_eq_u32 s{s.sRole}, 0
        s_cselect_b32 s{s.sA0}, 10240, 0
        s_cselect_b32 s{s.sB0}, 0, 10240
        s_cselect_b32 s{s.s8}, 9, 8
        s_cselect_b32 s{s.s9}, 8, 9
        s_cselect_b32 s{s.sJ}, -4, 1
        s_cselect_b32 s{s.sSw}, 64, 0
        s_lshl_b32 s{s.s8}, s{s.s8}, 10
        s_lshl_b32 s{s.s9}, s{s.s9}, 10
        s_lshl_b32 s{s.sJ}, s{s.sJ}, 7
        s_add_u32 s{s.sA0}, s{s.sA0}, s{s.sPoff}
        s_add_u32 s{s.sB0}, s{s.sB0}, s{s.sPoff}
        s_add_u32 s{s.s8}, s{s.s8}, s{s.sPoff}
        s_add_u32 s{s.s9}, s{s.s9}, s{s.sPoff}
        s_add_u32 s{s.sA1}, s{s.sA0}, 4096
        s_add_u32 s{s.sB1}, s{s.sB0}, 4096
        """)
        if s.finalt: k.e(f"s_add_u32 s48, s{s.sP}, {8*ACT_BYTES}\ns_addc_u32 s49, s{s.sP+1}, 0\ns_mov_b32 s50, {8*ACT_BYTES}\ns_mov_b32 s51, 0x00020000")
        k.add(I(f"buffer_store_dword v{s.vFV}, v{s.vZ}, s[{s.sF}:{s.sF+3}], s{s.sMy} offen sc1", "vst", tag="xcc"))
    def chunk0_off(s, sreg):
        s.k.e(f"s_cmp_eq_u32 s{s.sRole}, 0\ns_cselect_b32 s{s.sFl}, 640, 0\ns_add_u32 s{sreg}, s{sreg}, s{s.sFl}")
    def pos(s, p):
        if p < 4: return s.sA0, p * 1024
        if p < 8: return s.sA1, (p - 4) * 1024
        if p == 8: return s.s8, 0
        if p == 9: return s.s9, 0
        if p < 14: return s.sB0, (p - 10) * 1024
        return s.sB1, (p - 14) * 1024
    def cinit(s, p, nbl, mb):
        return V(s.CU + (p % 2) * 16 + (nbl * 2 + mb) * 4, 4) if p >= 10 else 0
    def mode_items(s, st, e_load, e_use):
        if s.allsc1: return
        st.append(Item(I(f"buffer_load_dword v{s.vF}, v{s.vZ}, s[{s.sF}:{s.sF+3}], s{s.sPa} offen sc1", "vmem", wr=(V(s.vF),), tag="pxcc"), e_load))
        st.append(Item(WaitVm(["pxcc"]), e_use - 3, deadline=e_use))
        st.append(Item(I(f"v_readfirstlane_b32 s{s.sFl}, v{s.vF}", "valu", rd=(V(s.vF),)), e_use - 3, deadline=e_use))
        st.append(Item(I(f"s_nop 0\ns_cmp_eq_u32 s{s.sFl}, s{s.sX}\ns_cselect_b64 vcc, 0, -1", "salu"), e_use - 2, deadline=e_use))
    def pf_items(s, st, e0, e1, td):
        if s.allsc1: return
        for q, (p, mb) in enumerate((p, mb) for p in list(range(10, 18)) + [9] for mb in range(2)):
            sr, off = s.pos(p)
            e = e0 + (e1 - e0) * q // 18
            st.append(Item(gload(td, V(s.vL[mb]), s.sP, f"s{sr}", off, "pf"), e, deadline=e + 10))
    def dual(s, lines, rd, tag):
        if s.allsc1: return I("\n".join(l + " sc1" for l in lines), "vst", rd=rd, tag=tag, sz=len(lines))
        if s.nodual: return I("\n".join(lines), "vst", rd=rd, tag=tag, sz=len(lines))
        a = s.k.lab("pa"); b = s.k.lab("pb")
        t = f"s_cbranch_vccz {a}\n" + "\n".join(l + " sc1" for l in lines) + f"\ns_branch {b}\n{a}:\n" + "\n".join(lines) + f"\n{b}:"
        return I(t, "vst", rd=rd, tag=tag, sz=len(lines))
    def st_line(s, reg, mb, p, flags=""):
        sr, off = s.pos(p)
        if s.nost or (s.nofin and p >= 9) or (s.nosnd and p < 9): return "s_nop 0"
        if s.finalt and p >= 9: return f"buffer_store_dwordx4 {reg}, v{s.vL[mb]}, s[48:51], s{sr} offen" + (f" offset:{off}" if off else "") + flags
        return f"buffer_store_dwordx4 {reg}, v{s.vL[mb]}, s[{s.sP}:{s.sP+3}], s{sr} offen" + (f" offset:{off}" if off else "") + flags
    def check(s, st, need, e_load, e_chk, dl):
        k = s.k
        sp = k.lab("spin"); bk = k.lab("spb")
        x = I(f"s_cmp_ge_u32 s{s.sFl}, {0 if s.nowait else need}\ns_cbranch_scc0 {sp}\n{bk}:", "salu"); x.tag = ("chkf", need)
        st.append(Item(x, e_chk, deadline=dl, after=tuple(e_load)))
        s.tail.append(f"""
        {sp}:
        s_sleep 2
        buffer_load_dword v{s.vF}, v{s.vZ}, s[{s.sF}:{s.sF+3}], s{s.sPa} offen offset:4 sc1
        s_waitcnt vmcnt(0)
        v_readfirstlane_b32 s{s.sFl}, v{s.vF}
        s_nop 0
        s_cmp_ge_u32 s{s.sFl}, {need}
        s_cbranch_scc0 {sp}
        s_branch {bk}
        """)
    def refresh(s, st, n, e_load, e_use):
        tag = ("fl", n)
        st.append(Item(I(f"buffer_load_dword v{s.vF}, v{s.vZ}, s[{s.sF}:{s.sF+3}], s{s.sPa} offen offset:4 sc1", "vmem", wr=(V(s.vF),), tag=tag), e_load, deadline=e_load + 2))
        if not s.nowait: st.append(Item(WaitVm([tag]), e_use - 2, deadline=e_use))
        it = Item(I(f"v_readfirstlane_b32 s{s.sFl}, v{s.vF}", "valu", rd=(V(s.vF),)), e_use - 2, deadline=e_use)
        st.append(it); return it
    def sel_setup(s, vl, t0, t1):
        b = s.SEL
        s.k.e(f"""
        v_lshrrev_b32 v{t0}, 4, v{vl}
        v_bfe_u32 v{t1}, v{vl}, 2, 2
        v_cmp_eq_u32 vcc, v{t0}, v{t1}
        v_and_b32 v{t0}, 1, v{vl}
        v_lshlrev_b32 v{t0}, 4, v{t0}
        v_mov_b32 v{t1}, 0x3f80
        v_lshlrev_b32 v{t0}, v{t0}, v{t1}
        v_cndmask_b32 v{t0}, 0, v{t0}, vcc
        v_and_b32 v{t1}, 2, v{vl}
        v_cmp_eq_u32 vcc, 0, v{t1}
        v_mov_b32 v{b}, 0
        v_mov_b32 v{b+1}, 0
        v_cndmask_b32 v{b+2}, 0, v{t0}, vcc
        v_cndmask_b32 v{b+3}, v{t0}, 0, vcc
        v_mov_b32 v{b+4}, 0
        v_mov_b32 v{b+5}, 0
        """)
    def rxreg(s, p, mb):
        if p == 9: return V(s.RX9 + 4 * mb, 4)
        return V(s.RX + (((p - 10) % 4) * 2 + mb) * 4, 4)
    def add_mfmas(s, P, acc, p):
        idx = []
        for nbl in range(2):
            for mb in range(2):
                sel = V(s.SEL + (2 if nbl == 0 else 0), 4)
                idx.append(P.m(None, lambda Ar, nbl=nbl, mb=mb, sel=sel: mfma(acc(p, nbl, mb), sel, s.rxreg(p, mb))))
        if not s.nowait: P.pre[idx[0]] = P.pre.get(idx[0], []) + [WaitVm([("rx", p)])]
        return idx[0], idx[-1]
    def verify(s, body):
        pub = {}; chk = {}
        for i, x in enumerate(body):
            if isinstance(x, I) and isinstance(x.tag, tuple):
                if x.tag[0] == "flg": pub[x.tag[1]] = i
                if x.tag[0] == "chkf": chk[x.tag[1]] = i
        assert len(pub) == 2 and len(chk) == 2
        for n in pub: assert pub[n] < chk[n], n
    def build(s, P, acc, first, last, addf, Lp):
        rf = P.stream("rf"); fl = P.stream("fl"); ep = P.stream("ep")
        pk = lambda p, mb: V(s.PK + ((p % 2) * 2 + mb) * 4, 4)
        order = [p for p in range(18) if p != 9] + [9]
        for p in order:
            e = last[p] + 4
            dl = (first[p + 2] - 1) if (p + 2 < 18 and p not in (7, 9)) else None
            if p == 7: dl = first[11] - 1
            pkp = (lambda mb: s.rxreg(9, mb)) if p == 9 else (lambda mb: pk(p, mb))
            for mb in range(2):
                for nbl in range(2):
                    a = acc(p, nbl, mb)
                    for q in range(2):
                        ep.append(Item(valu("v_cvt_pk_bf16_f32", pkp(mb)[2 * nbl + q], a[2 * q], a[2 * q + 1]), e, deadline=dl, slack=4))
                if p <= 8:
                    ep.append(Item(s.dual([s.st_line(pkp(mb), mb, p)], (pkp(mb),), ("snd", p)), e + 6 * mb))
                else:
                    ep.append(Item(I(s.st_line(pkp(mb), mb, p, s.fin_flags), "vst", rd=(pkp(mb),), tag="st"), e + 6 * mb))
            if p in (3, 8):
                val = 1 if p == 3 else 2
                e2 = last[p] + int(s.dpub * Lp)
                fl.append(Item(valu("v_mov_b32", V(s.vFV), val), e2 - 2, after=(ep[-1],)))
                if not s.nowait: fl.append(Item(WaitVm([("snd", p)]), e2))
                fl.append(Item(s.dual([f"buffer_store_dword v{s.vFV}, v{s.vZ}, s[{s.sF}:{s.sF+3}], s{s.sMy} offen offset:4"], (V(s.vFV),), ("flg", val)), e2, deadline=e2 + 2))
        def ld(p, mb):
            sr, off = s.pos(p)
            if s.norx: return I("s_nop 0", "salu")
            return gload(s.rxreg(p, mb), V(s.vL[mb]), s.sP, f"s{sr}", off, ("rx", p), flags=s.rxf)
        for val, ps in ((1, (10, 11, 12, 13)), (2, (14, 9, 15, 16, 17))):
            e_ld = addf[ps[0]] - int(s.dld * Lp)
            r = s.refresh(rf, val, e_ld - 4 - int(s.dref * Lp), e_ld - 4)
            s.check(rf, val, [r], e_ld - 2, e_ld)
            for p in ps:
                e = max(e_ld, addf[p - 4] + 4) if (p >= 14) else e_ld
                for mb in range(2): rf.append(Item(ld(p, mb), e, deadline=min(e + 12, addf[p] - 1)))
    def emit_tail(s):
        for t in s.tail: s.k.e(t)
```

```python
from fw import *
def DUM(x): return x if isinstance(x, Reg) else V(x)

def srd_txt(s, lo, hi, nbytes):
    return [salu(f"s_mov_b32 s{s}, s{lo}"), salu(f"s_mov_b32 s{s+1}, s{hi}"), salu(f"s_mov_b32 s{s+2}, {nbytes}"), salu(f"s_mov_b32 s{s+3}, 0x00020000")]
GX = [2]
def ids(s_hp, s_rb):
    if GX[0] == 4:
        return [salu(f"s_and_b32 s{s_hp}, s2, 3"), salu(f"s_lshl_b32 s{s_hp}, s{s_hp}, 2"), salu(f"s_bfe_u32 s{s_rb}, s2, 0x20003"),
                salu(f"s_add_u32 s{s_hp}, s{s_hp}, s{s_rb}"), salu(f"s_lshr_b32 s{s_rb}, s2, 5"), salu(f"s_bitcmp1_b32 s2, 2"), salu(f"s_cselect_b32 vcc_lo, 8, 0"), salu(f"s_add_u32 s{s_rb}, s{s_rb}, vcc_lo")]
    return [salu(f"s_and_b32 s{s_hp}, s2, 7"), salu(f"s_lshl_b32 s{s_hp}, s{s_hp}, 1"), salu(f"s_bfe_u32 s{s_rb}, s2, 0x10003"),
            salu(f"s_add_u32 s{s_hp}, s{s_hp}, s{s_rb}"), salu(f"s_lshr_b32 s{s_rb}, s2, 4")]
def ld(vd, va, srd, so, off=0, flags=""):
    return gload(vd, V(va), srd, f"s{so}", off, "pf", flags=flags)

def pf_contig(vl16, vd, srd, st, st2, s_a, mul_a, s_rb, share, s_w, nw, base=0, flags=""):
    L = [salu(f"s_mul_i32 s{st}, s{s_a}, {mul_a}"), salu(f"s_mul_i32 s{st2}, s{s_rb}, {share}"), salu(f"s_add_u32 s{st}, s{st}, s{st2}"),
         salu(f"s_lshl_b32 s{st2}, s{s_w}, 10"), salu(f"s_add_u32 s{st}, s{st}, s{st2}")]
    if base: L.append(salu(f"s_add_u32 s{st}, s{st}, {base}"))
    n = -(-share // (1024 * nw))
    for i in range(n):
        L.append(ld(vd, vl16, srd, st, flags=flags))
        if i + 1 < n: L.append(salu(f"s_add_u32 s{st}, s{st}, {1024*nw}"))
    return L
def pf_rows(vl, va, vb, vd, srds, st, st2, s_a, colb, s_rb, nrows, stride, lanes_per_row, s_w, nw, flags=""):
    rpi = 64 // lanes_per_row
    if lanes_per_row == 32:
        L = [valu("v_lshrrev_b32", V(va), 5, V(vl)), valu("v_and_b32", V(vb), 31, V(vl))]
    else:
        L = [valu("v_mov_b32", V(va), 0), valu("v_min_u32", V(vb), lanes_per_row - 1, V(vl))]
    L += [salu(f"s_mov_b32 s{st2}, {stride}"), valu("v_lshlrev_b32", V(vb), 4, V(vb)), valu("v_mad_u32_u24", V(va), V(va), f"s{st2}", V(vb)),
          salu(f"s_mul_i32 s{st}, s{s_rb}, {nrows}"), salu(f"s_mul_i32 s{st2}, s{s_w}, {rpi}"), salu(f"s_add_u32 s{st}, s{st}, s{st2}"),
          salu(f"s_mul_i32 s{st}, s{st}, {stride}"), salu(f"s_mul_i32 s{st2}, s{s_a}, {colb}"), salu(f"s_add_u32 s{st}, s{st}, s{st2}")]
    n = -(-nrows // (rpi * nw))
    for i in range(n):
        for srd in srds: L.append(ld(vd, va, srd, st, flags=flags))
        if i + 1 < n: L.append(salu(f"s_add_u32 s{st}, s{st}, {rpi*nw*stride}"))
    return L
def pf_code(k, vl16, vd, srd, st, first_label, end_label, kb_per_group=2):
    pc = k.lab("pc")
    L = [I(f"s_getpc_b64 s[{srd}:{srd+1}]\n{pc}:\ns_add_u32 s{srd}, s{srd}, {first_label}-{pc}\ns_addc_u32 s{srd+1}, s{srd+1}, ({first_label}-{pc})>>32", "salu"),
         I(f"s_mov_b32 s{srd+2}, {end_label}-{first_label}\ns_mov_b32 s{srd+3}, 0x00020000", "salu"),
         I(f"s_lshr_b32 s{st}, s2, 3\ns_mul_i32 s{st}, s{st}, {1024*kb_per_group}", "salu")]
    for i in range(kb_per_group): L.append(ld(vd, vl16, srd, st, off=1024 * i))
    return L
```

```python
from fw import *

COST = dict(mfma=8, valu=4, trans=8, dsr=4, dsw=8, salu=4, vmem=4, vst=4, wait=4, other=4, nop=4)

class Item:
    __slots__ = ("ins", "earliest", "bar", "deadline", "after", "done", "slack")
    def __init__(s, ins, earliest=-1, bar=None, deadline=None, after=(), slack=0):
        s.ins = ins; s.earliest = earliest; s.bar = bar; s.deadline = deadline; s.after = after; s.done = None; s.slack = slack
def cost(ins):
    if isinstance(ins, (WaitVm, WaitLg, tuple)): return 4
    return COST[ins.kind]

class Pipe:
    def __init__(s, ring, cap=8, pairwait=2):
        s.ring = ring; s.mf = []; s.frags = []; s.streams = {}; s.prio = []
        s.cap = cap; s.pairwait = pairwait
        s.tile_tags = {}; s.pre = {}; s.capov = {}
    def frag(s, tile, rdfn):
        s.frags.append((tile, rdfn)); return len(s.frags) - 1
    def m(s, frag, fn):
        s.mf.append((frag, fn)); return len(s.mf) - 1
    def stream(s, name):
        if name not in s.streams: s.streams[name] = []; s.prio.append(name)
        return s.streams[name]
    def plan(s):
        Rn = len(s.ring)
        s.first = {}; s.last = {}
        for i, (f, _) in enumerate(s.mf):
            if f is None: continue
            s.first.setdefault(f, i); s.last[f] = i
        s.eT = {}; s.lastrdT = {}
        for f, (tile, _) in enumerate(s.frags):
            e = s.last[f - Rn] if f >= Rn else -1
            s.eT.setdefault(tile, e)
            s.lastrdT[tile] = e + 1
    def emit(s):
        s.plan()
        Rn = len(s.ring); first = s.first; last = s.last
        rd = []; sync = []
        prev_tile = None
        for f, (tile, rdfn) in enumerate(s.frags):
            e = last[f - Rn] if f >= Rn else -1
            if tile != prev_tile:
                sync.append(Item(WaitVm(s.tile_tags[tile]), e - 3, deadline=e - 2))
                sync.append(Item(("BAR", tile), e - 2, deadline=e - 1))
                prev_tile = tile
            for ins in rdfn(s.ring[f % Rn]):
                rd.append(Item(ins, e, bar=tile, deadline=first[f] - 1))
        out = []
        bars_done = set()
        streams = [("sync", sync), ("rd", rd)] + [(n, s.streams[n]) for n in s.prio]
        idx = {n: 0 for n, _ in streams}
        for n, st in streams:
            d = None
            for it in reversed(st):
                if it.deadline is not None: d = it.deadline if d is None else min(d, it.deadline)
                it.deadline = d
        def put(it):
            it.done = len(out)
            if isinstance(it.ins, tuple):
                out.append(I("s_barrier", "other")); bars_done.add(it.ins[1]); return 4
            out.append(it.ins); return cost(it.ins)
        def fill(gap, budget):
            nds = 0
            while idx["sync"] < len(sync) and sync[idx["sync"]].deadline <= gap - 1:
                budget -= put(sync[idx["sync"]]); idx["sync"] += 1
            if idx["rd"] < len(rd):
                it = rd[idx["rd"]]
                if it.earliest <= gap and it.bar in bars_done:
                    budget -= put(it); idx["rd"] += 1; nds = 1
            for forced_only in (True, False):
                progress = True
                while progress:
                    progress = False
                    order = streams if forced_only else [streams[1], streams[0]] + streams[2:]
                    for n, st in order:
                        i = idx[n]
                        if i >= len(st): continue
                        it = st[i]
                        if it.earliest - it.slack > gap: continue
                        if it.bar is not None and it.bar not in bars_done: continue
                        if any(a.done is None or a.done >= len(out) - 1 for a in it.after): continue
                        forced = it.deadline is not None and it.deadline <= gap
                        if forced_only and not forced: continue
                        if it.earliest > gap and not forced: continue
                        c = cost(it.ins)
                        isds = isinstance(it.ins, I) and it.ins.kind in ("dsr", "dsw") and n == "rd"
                        if isds and nds >= 1 and 0 <= gap < 10**8 and not forced: continue
                        if forced or c <= budget:
                            if isds: nds += 1
                            budget -= put(it); idx[n] += 1; progress = True
                            break
            return budget
        fill(-1, 64)
        carry = 0
        PW = s.pairwait
        for i, (f, fn) in enumerate(s.mf):
            for x in s.pre.get(i, []): out.append(x)
            if f is not None and first[f] == i:
                need = [s.ring[f % Rn]]
                if f % PW == 0:
                    for q in range(1, PW):
                        if f + q >= len(s.frags): break
                        nxt = s.ring[(f + q) % Rn]
                        pend = any((it.ins.wr & nxt.set()) and it.deadline == first[f + q] - 1 for it in rd[idx["rd"]:idx["rd"] + 2 * Rn + 4])
                        if pend: break
                        need.append(nxt)
                out.append(WaitLg(need))
            out.append(fn(s.ring[f % Rn]) if f is not None else fn(None))
            extra = 0
            if i + 1 < len(s.mf):
                f2 = s.mf[i + 1][0]
                if f2 is not None and first[f2] == i + 1 and f2 % PW == 0: extra = 4
                extra += 4 * len([x for x in s.pre.get(i + 1, []) if isinstance(x, (WaitVm, WaitLg))])
            b = s.capov.get(i, s.cap) + carry - extra
            left = fill(i, b)
            for n, st in streams:
                if idx[n] < len(st) and st[idx[n]].deadline is not None and st[idx[n]].deadline <= i:
                    for _ in range(400):
                        if idx[n] < len(st) and st[idx[n]].deadline is not None and st[idx[n]].deadline <= i:
                            out.append(I("s_nop 0", "nop")); fill(i, -100)
                    assert not (idx[n] < len(st) and st[idx[n]].deadline is not None and st[idx[n]].deadline <= i), (n, i, st[idx[n]].ins.t)
            carry = max(min(left, 0), -8)
        for _ in range(200):
            fill(10**9, 10**9)
            if all(idx[n] == len(st) for n, st in streams): break
            out.append(I("s_nop 0", "nop"))
        for n, st in streams:
            assert idx[n] == len(st), (n, idx[n], len(st))
        return out
```

```python
from fw import *
from pf import *
import struct
def fbits(x): return "0x%08x" % struct.unpack("<I", struct.pack("<f", x))[0]
QSCALE = 1.4426950408889634 * 128 ** -0.5

def srd(k, s, lo, hi, off, nbytes):
    if off:
        k.e(f"s_add_u32 s{s}, s{lo}, {off}\ns_addc_u32 s{s+1}, s{hi}, 0")
    else:
        k.e(f"s_mov_b32 s{s}, s{lo}\ns_mov_b32 s{s+1}, s{hi}")
    k.e(f"s_mov_b32 s{s+2}, {nbytes}\ns_mov_b32 s{s+3}, 0x00020000")

def rnd(k, regs):
    for i in range(0, len(regs), 2):
        a, b = regs[i], regs[i + 1]
        k.e(f"v_cvt_pk_bf16_f32 v{b}, v{a}, v{b}")
    for i in range(0, len(regs), 2):
        a, b = regs[i], regs[i + 1]
        k.e(f"v_lshlrev_b32 v{a}, 16, v{b}\nv_and_b32 v{b}, 0xffff0000, v{b}")
def rnd1(k, r):
    k.e(f"v_cvt_pk_bf16_f32 v{r}, v{r}, v{r}\nv_and_b32 v{r}, 0xffff0000, v{r}")
def unpack(k, dst, src):
    for i, s in enumerate(src):
        k.e(f"v_lshlrev_b32 v{dst[2*i]}, 16, v{s}\nv_and_b32 v{dst[2*i+1]}, 0xffff0000, v{s}")

def gen_mod(name="mod_kernel", stamps=0, prefetch=True):
    k = Kern(name, vgpr=64, accum=64)
    npf = 2 if prefetch else 0
    done = k.lab("done")
    k.e(f"""
    s_cmp_ge_u32 s2, 256
    s_cbranch_scc1 {done}
    """)
    if stamps: stamp_begin(k)
    fin = k.lab("fin")
    k.e(f"""
    s_load_dwordx4 s[20:23], s[0:1], {KA['c']}
    s_load_dwordx2 s[24:25], s[0:1], {KA['ws']}
    s_load_dwordx2 s[40:41], s[0:1], {KA['wq']}
    v_lshrrev_b32 v1, 1, v0
    v_and_b32 v2, 1, v0
    s_movk_i32 s26, 6912
    v_mul_u32_u24 v3, s26, v1
    v_lshl_add_u32 v3, v2, 4, v3
    v_lshlrev_b32 v4, 1, v1
    s_lshl_b32 s27, s2, 5
    s_waitcnt lgkmcnt(0)
    """)
    srd(k, 4, 20, 21, 0, 1152); srd(k, 8, 22, 23, 0, 576 * 3456 * 2); srd(k, 12, 24, 25, WS_MOD, 3456 * 4)
    srd(k, 16, 24, 25, WS_FLAG, 0x20000)
    k.e("v_mov_b32 v5, 0\nv_lshlrev_b32 v6, 2, v0\ns_lshl_b32 s28, s2, 10\nbuffer_store_dword v5, v6, s[16:19], s28 offen")
    for i in range(5):
        k.e(f"buffer_load_ushort v{8+i}, v4, s[4:7], 0 offen offset:{256*i}")
    for i in range(5):
        k.e(f"buffer_load_dwordx4 v[{16+4*i}:{19+4*i}], v3, s[8:11], s27 offen")
        k.e(f"v_add_u32 v3, {128*6912}, v3")
    if prefetch:
        k.add(srd_txt(44, 40, 41, 576 * 4096 * 2) + ids(48, 49) + pf_wq(0, 56, 57, 58, 44, 48, 49, 50, 51))
        k.add(pf_code(k, 0, 56, 58, 52, 50, "ka_kernel", "code_end"))
    k.e(f"s_cmp_ge_u32 s2, 216\ns_cbranch_scc1 {fin}")
    k.e(f"s_waitcnt vmcnt({5 + npf})")
    for i in range(5):
        k.e(f"""
        v_lshlrev_b32 v{8+i}, 16, v{8+i}
        v_mul_f32 v13, {fbits(-1.4426950408889634)}, v{8+i}
        v_exp_f32 v13, v13
        s_nop 0
        v_add_f32 v13, 1.0, v13
        v_rcp_f32 v13, v13
        s_nop 0
        v_mul_f32 v{8+i}, v{8+i}, v13
        """)
        rnd1(k, 8 + i)
    for j in range(8): k.e(f"v_mov_b32 v{40+j}, 0")
    for i in range(5):
        k.e(f"s_waitcnt vmcnt({4-i+npf})")
        unpack(k, list(range(48, 56)), [16 + 4 * i + q for q in range(4)])
        for j in range(8): k.e(f"v_fmac_f32 v{40+j}, v{8+i}, v{48+j}")
    for sh in (2, 4, 8):
        k.e("s_nop 1")
        for j in range(8): k.e(f"v_add_f32_dpp v{40+j}, v{40+j}, v{40+j} row_shr:{sh} row_mask:0xf bank_mask:0xf bound_ctrl:0")
    k.e(f"""
    v_and_b32 v5, 15, v0
    v_cmp_le_u32 vcc, 14, v5
    v_lshrrev_b32 v6, 4, v0
    v_lshlrev_b32 v6, 6, v6
    v_lshl_add_u32 v6, v2, 5, v6
    s_and_saveexec_b64 s[30:31], vcc
    ds_write_b128 v6, v[40:43]
    ds_write_b128 v6, v[44:47] offset:16
    s_mov_b64 exec, s[30:31]
    s_waitcnt lgkmcnt(0)
    s_barrier
    v_cmp_gt_u32 vcc, 16, v0
    v_lshlrev_b32 v6, 2, v0
    s_and_saveexec_b64 s[30:31], vcc
    s_cbranch_execz {fin}
    """)
    for i in range(16): k.e(f"ds_read_b32 v{16+i}, v6 offset:{64*i}")
    k.e("s_waitcnt lgkmcnt(0)")
    for i in range(1, 16): k.e(f"v_add_f32 v16, v16, v{16+i}")
    rnd1(k, 16)
    k.e(f"""
    v_add_f32 v17, 1.0, v16
    """)
    rnd1(k, 17)
    k.e(f"""
    s_mul_i32 s28, s2, 1821
    s_lshr_b32 s28, s28, 16
    s_cmp_eq_u32 s28, 1
    s_cselect_b32 s29, 1, 0
    s_cmp_eq_u32 s28, 4
    s_cselect_b32 s29, 1, s29
    s_cmp_eq_u32 s29, 1
    s_cselect_b64 vcc, -1, 0
    v_cndmask_b32 v16, v16, v17, vcc
    s_lshl_b32 s27, s2, 6
    buffer_store_dword v16, v6, s[12:15], s27 offen
    {fin}:
    """)
    if stamps: stamp_flush(k, stamps, 2)
    k.e(f"{done}:\ns_endpgm")
    return k, (k, 256, 256, 1024)

def gen_row(name, mode, nsplit=8, qscale=True, stamps=0, prefetch=True):
    k = Kern(name, vgpr=128, accum=128)
    done = k.lab("done")
    k.e(f"""
    s_cmp_ge_u32 s2, 256
    s_cbranch_scc1 {done}
    """)
    if stamps: stamp_begin(k)
    k.e(f"""
    s_load_dwordx2 s[20:21], s[0:1], {KA['x']}
    s_load_dwordx2 s[22:23], s[0:1], {KA['out']}
    s_load_dwordx2 s[24:25], s[0:1], {KA['ws']}
    s_load_dwordx8 s[40:47], s[0:1], {KA['kc']}
    v_and_b32 v1, 7, v0
    v_lshrrev_b32 v2, 3, v0
    v_lshlrev_b32 v3, 8, v2
    v_lshl_add_u32 v3, v1, 4, v3
    v_lshrrev_b32 v4, 2, v2
    v_and_b32 v5, 3, v2
    v_lshlrev_b32 v6, 6, v4
    v_lshl_add_u32 v6, v5, 3, v6
    v_lshlrev_b32 v7, 1, v6
    s_movk_i32 s26, 1152
    v_mad_u32_u24 v6, v1, s26, v6
    s_lshr_b32 s27, s2, 1
    s_mul_i32 s27, s27, 18432
    s_and_b32 s28, s2, 1
    s_lshl_b32 s28, s28, 7
    s_add_u32 s27, s27, s28
    s_mul_i32 s28, s2, 9216
    s_waitcnt lgkmcnt(0)
    """)
    srd(k, 4, 24, 25, WS_MOD, 3456 * 4)
    srd(k, 8, 24, 25, WS_PART, ACT_BYTES * nsplit)
    if mode == "r2": srd(k, 12, 22, 23, 0, ACT_BYTES)
    else: srd(k, 12, 20, 21, 0, ACT_BYTES)
    srd(k, 16, 24, 25, WS_X1, ACT_BYTES)
    srd(k, 32, 24, 25, WS_H1 if mode == "ln1" else WS_H2, ACT_BYTES)
    X = list(range(16, 24)); T = list(range(24, 32)); G = list(range(32, 40)); Am = list(range(40, 48)); Sm = list(range(48, 56))
    nld = 0
    if mode != "ln1":
        k.e("s_mov_b32 s29, s27")
        for p in range(nsplit):
            k.e(f"buffer_load_dwordx4 v[{64+4*p}:{67+4*p}], v3, s[8:11], s29 offen")
            k.e(f"s_add_u32 s29, s29, {ACT_BYTES}")
    if mode == "r2":
        k.e(f"buffer_load_dwordx4 v[8:11], v3, s[16:19], s27 offen")
    else:
        k.e(f"buffer_load_dwordx2 v[8:9], v6, s[12:15], s28 offen\nbuffer_load_dwordx2 v[10:11], v6, s[12:15], s28 offen offset:32")
    def ldmod(dst, sec):
        k.e(f"s_movk_i32 s30, {sec*2304}")
        k.e(f"buffer_load_dwordx4 v[{dst[0]}:{dst[3]}], v7, s[4:7], s30 offen\nbuffer_load_dwordx4 v[{dst[4]}:{dst[7]}], v7, s[4:7], s30 offen offset:64")
    if mode == "ln1": ldmod(Am, 1); ldmod(Sm, 0); nafter = 4
    elif mode == "r1": ldmod(G, 2); ldmod(Am, 4); ldmod(Sm, 3); nafter = 8
    else: ldmod(G, 5); nafter = 3
    if mode != "ln1":
        A_ = list(range(56, 64))
        if mode == "r1" and prefetch:
            k.e("v_and_b32 v110, 63, v0\nv_lshlrev_b32 v110, 4, v110")
            k.add(pf_code(k, 110, V(112, 4), 48, 52, "kb_kernel", "r2_kernel", 2)); nafter += 2
        for p in range(nsplit):
            k.e(f"s_waitcnt vmcnt({nafter + nsplit - 1 - p})")
            src = [64 + 4 * p + q for q in range(4)]
            if p == 0: unpack(k, A_, src)
            else:
                unpack(k, T, src)
                for i in range(8): k.e(f"v_add_f32 v{A_[i]}, v{A_[i]}, v{T[i]}")
        k.e(f"s_waitcnt vmcnt({2 if (mode == 'r1' and prefetch) else 0})")
        unpack(k, X, [8, 9, 10, 11])
        rnd(k, A_)
        for i in range(8): k.e(f"v_mul_f32 v{A_[i]}, v{A_[i]}, v{G[i]}")
        rnd(k, A_)
        for i in range(8): k.e(f"v_add_f32 v{X[i]}, v{X[i]}, v{A_[i]}")
        for i in range(4): k.e(f"v_cvt_pk_bf16_f32 v{8+i}, v{X[2*i]}, v{X[2*i+1]}")
        if mode == "r2":
            k.e(f"buffer_store_dwordx2 v[8:9], v6, s[12:15], s28 offen\nbuffer_store_dwordx2 v[10:11], v6, s[12:15], s28 offen offset:32")
            if stamps: stamp_flush(k, stamps, 2)
            k.e(f"{done}:\ns_endpgm")
            return k, (k, 256, 576, 0)
        k.e(f"buffer_store_dwordx4 v[8:11], v3, s[16:19], s27 offen")
        unpack(k, X, [8, 9, 10, 11])
    else:
        npf = 0
        if prefetch:
            k.add(srd_txt(48, 40, 41, 16 * 2048 * 256) + srd_txt(52, 42, 43, 16 * 2048 * 256) + srd_txt(56, 46, 47, 576 * 4096 * 2) + ids(60, 61))
            k.add(pf_kv(0, 110, 111, 48, 52, 60, 61, 62, 63) + pf_wo(0, 112, 113, 56, 60, 61, 62, 63)); npf = 3
        k.e(f"s_waitcnt vmcnt({4+npf})")
        unpack(k, X, [8, 9, 10, 11])
    k.e(f"""
    v_lshrrev_b32 v12, 4, v0
    v_mul_u32_u24 v13, 144, v1
    v_lshl_add_u32 v12, v12, 2, v13
    v_and_b32 v14, 8, v0
    v_cmp_eq_u32 s[36:37], 0, v14
    """)
    def rowsum(src, dst, region):
        k.e(f"""
        v_add_f32 v{dst}, v{src[0]}, v{src[1]}
        v_add_f32 v14, v{src[2]}, v{src[3]}
        v_add_f32 v15, v{src[4]}, v{src[5]}
        v_add_f32 v{dst}, v{dst}, v14
        v_add_f32 v14, v{src[6]}, v{src[7]}
        v_add_f32 v15, v15, v14
        v_add_f32 v{dst}, v{dst}, v15
        s_nop 1
        v_add_f32_dpp v{dst}, v{dst}, v{dst} row_ror:8 row_mask:0xf bank_mask:0xf
        s_and_saveexec_b64 s[38:39], s[36:37]
        ds_write_b32 v12, v{dst} offset:{region}
        s_mov_b64 exec, s[38:39]
        s_waitcnt lgkmcnt(0)
        s_barrier
        """)
        for i in range(9): k.e(f"ds_read_b128 v[{64+4*i}:{67+4*i}], v13 offset:{region+16*i}")
        k.e("s_waitcnt lgkmcnt(0)")
        for st in (18, 9):
            for i in range(st): k.e(f"v_add_f32 v{64+i}, v{64+i}, v{64+st+i}")
        for i in range(1, 9): k.e(f"v_add_f32 v64, v64, v{64+i}")
        k.e(f"v_mul_f32 v{dst}, {fbits(1/576)}, v64")
    rowsum(X, 56, 0)
    for i in range(8): k.e(f"v_sub_f32 v{T[i]}, v{X[i]}, v56")
    for i in range(8): k.e(f"v_mul_f32 v{T[i]}, v{T[i]}, v{T[i]}")
    rowsum(T, 57, 1152)
    rnd(k, [56, 57])
    k.e(f"v_add_f32 v57, {fbits(1e-5)}, v57")
    rnd1(k, 57)
    k.e("v_sqrt_f32 v57, v57\ns_nop 0")
    rnd1(k, 57)
    k.e("v_rcp_f32 v57, v57")
    for i in range(8): k.e(f"v_sub_f32 v{X[i]}, v{X[i]}, v56")
    rnd(k, X)
    for i in range(8): k.e(f"v_mul_f32 v{X[i]}, v{X[i]}, v57")
    rnd(k, X)
    k.e(f"s_waitcnt vmcnt({npf if mode == 'ln1' else 0})")
    for i in range(8): k.e(f"v_mul_f32 v{X[i]}, v{X[i]}, v{Am[i]}")
    rnd(k, X)
    for i in range(8): k.e(f"v_add_f32 v{X[i]}, v{X[i]}, v{Sm[i]}")
    if mode == "ln1" and qscale:
        for i in range(8): k.e(f"v_mul_f32 v{X[i]}, {fbits(QSCALE)}, v{X[i]}")
    for i in range(4): k.e(f"v_cvt_pk_bf16_f32 v{8+i}, v{X[2*i]}, v{X[2*i+1]}")
    k.e(f"buffer_store_dwordx4 v[8:11], v3, s[32:35], s27 offen")
    if stamps: stamp_flush(k, stamps, 2)
    k.e(f"{done}:\ns_endpgm")
    return k, (k, 256, 576, 2304)
```

```python
import sys
from fw import *
from small import *
from ka import gen_ka
from kb import gen_kb
from k0 import gen_k0
NAME = "adaLN_cond__sliding_block_cached__glu_gated_reglu__prompt"
def header():
    L = open(f"cdna_kernels/{NAME}.s.ref").read().split("\n")
    return "\n".join(l for l in L[:15] if l.startswith(";") and "@launch" not in l)
def full(path, stamps=False, stf="", kb={}, ka={}, dup=False, k0={}, gx=2):
    import pf; pf.GX[0] = gx
    st = lambda i: (i + 1) if stamps else 0
    ks = [gen_k0(stamps=st(0), **k0), gen_ka(stamps=st(2), th=60.0, stf=stf, **ka), gen_row("r1_kernel", "r1", stamps=st(3)), gen_kb(stamps=st(4), stf=stf, **kb), gen_row("r2_kernel", "r2", stamps=st(5))]
    ls = [l for _, l in ks]
    if dup: ls = ls[:2] + [ls[1]] + ls[2:4] + [ls[3]] + ls[4:]
    txt = build(ls, [k for k, _ in ks], header())
    open(path, "w").write(txt)
    print(path, len(txt))
if __name__ == "__main__":
    full(f"cdna_kernels/{NAME}.s")
    full("full_st.s", stamps=True)
    STAMP_OP[0] = "s_memtime"
    full("full_cy.s", stamps=True)
    STAMP_OP[0] = "s_memrealtime"
```
